```python
import torch

def _softmax(x, axis=-1):
    return torch.softmax(x, dim=axis)
def _gelu(x):
    return torch.nn.functional.gelu(x, approximate="tanh")
def _silu(x):
    return torch.nn.functional.silu(x)
def _sigmoid(x):
    return torch.sigmoid(x)
def _layernorm(x, axis=-1, eps=1e-5):
    m = x.mean(dim=axis, keepdim=True)
    v = x.var(dim=axis, keepdim=True, unbiased=False)
    return (x - m) / torch.sqrt(v + eps)
def _scatter_add(tgt, idx, src, axis=0):
    return tgt.clone().index_add_(axis, idx, src)
def _segment_sum(src, seg, n):
    out = torch.zeros((n,) + src.shape[1:], dtype=src.dtype)
    return out.index_add_(0, seg, src)
def _pad(x, pw):
    flat = tuple(v for pair in reversed(pw) for v in pair)
    return torch.nn.functional.pad(x, flat)

kernel_name = 'gated_mix__ssm_conv_s4d__spectral_gfnet__prompt'

def setup_inputs():

    _w = (lambda a: (lambda t: t.to(torch.bfloat16) if t.is_floating_point() else t)(torch.as_tensor(a)))
    def _A_setup():
        Bsz, L, D, N = 1, 2048, 1024, 128
        return {
            "u": _w((lambda *s: torch.randn(*s, dtype=torch.bfloat16) * 0.05)(Bsz, L, D)),
            "log_A_real": _w((lambda *s: torch.randn(*s, dtype=torch.bfloat16) * 6.4)(D, N) * 0.5),
            "A_imag": _w((lambda *s: torch.randn(*s, dtype=torch.bfloat16) * 0.05)(D, N) * 3.14),
            "C_real": _w((lambda *s: torch.randn(*s, dtype=torch.bfloat16) * 0.05)(D, N) / N ** 0.5),
            "C_imag": _w((lambda *s: torch.randn(*s, dtype=torch.bfloat16) * 0.05)(D, N) / N ** 0.5),
            "log_dt": _w((lambda *s: torch.randn(*s, dtype=torch.bfloat16) * 0.05)(D) * 0.5 - 4.0),
            "D_skip": _w((lambda *s: torch.randn(*s, dtype=torch.bfloat16) * 0.05)(D)),
        }
    _A_in = _A_setup()

    def _B_setup():
        B, S, D = 1, 2048, 1024
        Df = D // 2 + 1
        return {
            "x": _w((lambda *s: torch.randn(*s, dtype=torch.bfloat16) * 0.05)(B, S, D)),
            "w_r": _w((lambda *s: torch.randn(*s, dtype=torch.bfloat16) * 0.8)(S, Df) * 0.02),
            "w_i": _w((lambda *s: torch.randn(*s, dtype=torch.bfloat16) * 0.8)(S, Df) * 0.02),
        }
    _B_in = _B_setup()

    return {
        "A_u": _A_in["u"],
        "A_log_A_real": _A_in["log_A_real"],
        "A_A_imag": _A_in["A_imag"],
        "A_C_real": _A_in["C_real"],
        "A_C_imag": _A_in["C_imag"],
        "A_log_dt": _A_in["log_dt"],
        "A_D_skip": _A_in["D_skip"],
        "B_x": _B_in["x"],
        "B_w_r": _B_in["w_r"],
        "B_w_i": _B_in["w_i"],
        "gate_w": _w((lambda *s: torch.randn(*s, dtype=torch.bfloat16) * 0.05)(1024) * 16.0),
    }

def reference(A_u, A_log_A_real, A_A_imag, A_C_real, A_C_imag, A_log_dt, A_D_skip, B_x, B_w_r, B_w_i, gate_w):
    def _A_ref(u, log_A_real, A_imag, C_real, C_imag, log_dt, D_skip):
        L = u.shape[1]
        dt = torch.exp(log_dt)
        A = -torch.exp(log_A_real) + 1j * A_imag
        C = (C_real + 1j * C_imag) * dt[:, None]
        pos = (lambda x, dt: x.to(dt))(torch.arange(L), log_dt.dtype)
        P = torch.exp((A * dt[:, None])[:, :, None] * pos[None, None, :])
        K = 2.0 * torch.einsum("dn,dnl->dl", C, P).real
        L2 = 2 * L
        u_t = (lambda x, *d: x.permute(*d))(u, 0, 2, 1)
        Kf = (lambda x, *a, **k: torch.fft.rfft(x.float(), *a, **k))(K, L2)
        Uf = (lambda x, *a, **k: torch.fft.rfft(x.float(), *a, **k))(u_t, L2)
        y = (lambda x, *a, **k: torch.fft.irfft(x, *a, **k).to(torch.bfloat16))(Uf * Kf[None, :, :], L2)[:, :, :L]
        y = (lambda x, *d: x.permute(*d))(y, 0, 2, 1)
        return y + u * D_skip[None, None, :]

    def _B_ref(x, w_r, w_i):
        B, S, D = x.shape
        X = (lambda x, axes=(-2,-1): torch.fft.rfft2(x.float(), dim=axes))(x, axes=(-2, -1))
        W = w_r + 1j * w_i
        X = X * W
        y = (lambda x, s, axes=(-2,-1): torch.fft.irfft2(x, s=s, dim=axes).to(torch.bfloat16))(X, (S, D), axes=(-2, -1))
        return y

    x = A_u
    g = _sigmoid((x * gate_w).sum(-1, keepdims=True))
    a = _A_ref(x, A_log_A_real, A_A_imag, A_C_real, A_C_imag, A_log_dt, A_D_skip)
    b = _B_ref(x, B_w_r, B_w_i)
    return g * a + (1 - g) * b
```

```python
import re

def v(n, c=1): return f"v{n}" if c == 1 else f"v[{n}:{n+c-1}]"
def s(n, c=1): return f"s{n}" if c == 1 else f"s[{n}:{n+c-1}]"

_RE = re.compile(r'^(-|neg\()?\|?([vs])(\d+)\|?\)?$')
_RR = re.compile(r'^(-)?([vs])\[(\d+):(\d+)\]$')
def regs(op):
    if not isinstance(op, str): return set()
    op = op.strip()
    m = _RE.match(op)
    if m: return {m.group(2)+m.group(3)}
    m = _RR.match(op)
    if m: return {m.group(2)+str(k) for k in range(int(m.group(3)), int(m.group(4))+1)}
    if op == 'vcc': return {'vcc'}
    if op == 'exec': return {'exec'}
    if op == 'm0': return {'m0'}
    return set()
def U(*ops):
    r = set()
    for o in ops: r |= regs(o)
    return r
def fmt(o):
    if isinstance(o, str): return o
    if isinstance(o, float):
        import struct
        if o in (0.5, -0.5, 1.0, -1.0, 2.0, -2.0, 4.0, -4.0): return repr(o)
        if o == 0.0: return '0'
        return hex(struct.unpack('<I', struct.pack('<f', o))[0])
    if isinstance(o, int):
        return str(o) if -16 <= o <= 64 else hex(o & 0xffffffff)
    raise ValueError(o)

TRANS = ('v_exp_f32', 'v_log_f32', 'v_rcp_f32', 'v_rsq_f32', 'v_sqrt_f32', 'v_sin_f32', 'v_cos_f32')

class Asm:
    def __init__(self):
        self.out = []
        self.reset()
        self.maxv = 0; self.maxs = 0
        self.nops = 0
    def reset(self):
        self.pos = 0
        self.h = []
        self.vm = []
        self.lg = []
    def raw(self, t): self.out.append(t)
    def comment(self, t): self.out.append('    ; '+t)
    def _track(self, rs):
        for r in rs:
            if r[0] == 'v' and r[1:].isdigit(): self.maxv = max(self.maxv, int(r[1:])+1)
            if r[0] == 's' and r[1:].isdigit(): self.maxs = max(self.maxs, int(r[1:])+1)
    def _waits(self, touched):
        n = None
        for k in range(len(self.vm)-1, -1, -1):
            if self.vm[k] & touched: n = len(self.vm)-1-k; break
        m = None
        for k in range(len(self.lg)-1, -1, -1):
            if self.lg[k][1] & touched:
                m = len(self.lg)-1-k
                if any(x[0] == 'smem' for x in self.lg): m = 0
                break
        if n is not None or m is not None: self.waitcnt(vm=n, lgkm=m)
    def waitcnt(self, vm=None, lgkm=None):
        p = []
        if vm is not None:
            vm = min(vm, 63); p.append(f'vmcnt({vm})'); self.vm = self.vm[len(self.vm)-vm:] if vm else []
        if lgkm is not None:
            lgkm = min(lgkm, 15); p.append(f'lgkmcnt({lgkm})'); self.lg = self.lg[len(self.lg)-lgkm:] if lgkm else []
        self.out.append('    s_waitcnt '+' '.join(p)); self.pos += 1
    def nop(self, n):
        while n > 0:
            k = min(n, 16); self.out.append(f'    s_nop {k-1}'); self.pos += k; n -= k; self.nops += k
    def _haz(self, kind, op, rd, wr, ex):
        need = 0
        isvalu = kind in ('valu', 'trans', 'dpp', 'perm', 'rdlane', 'dot')
        for (p, k, w, e) in self.h:
            d = self.pos - p - 1
            req = 0
            pv = k in ('valu', 'trans', 'dpp', 'perm', 'rdlane', 'dot')
            if pv:
                vw = {r for r in w if r[0] == 'v' and r != 'vcc'}
                sw = w - vw
                if kind == 'mfma' and vw & rd: req = max(req, 2)
                if kind in ('dpp', 'perm') and vw & rd: req = max(req, 2)
                if kind == 'rdlane' and vw & rd: req = max(req, 1)
                if k == 'trans' and isvalu and kind != 'trans' and vw & rd: req = max(req, 1)
                if k == 'dot' and (vw & (rd | wr)):
                    if not (kind == 'dot' and e == op and not (vw & ex)): req = max(req, 3)
                if sw & rd:
                    if isvalu: req = max(req, 4 if kind == 'rdlane' else 2)
                    if kind in ('vmem', 'vst', 'dma'): req = max(req, 5)
                    if kind == 'salu': req = max(req, 1)
            if k == 'mfma':
                passes = e['passes']; t = {4: (6, 8, 3), 8: (10, 12, 7)}[passes]
                if kind == 'mfma':
                    if w & ex['ab']: req = max(req, t[1])
                    if w & ex['c'] and w != ex['c']: req = max(req, t[0])
                    if w & wr and w != ex['c']: req = max(req, t[1])
                else:
                    if w & (rd | wr): req = max(req, t[1])
                    if isvalu and e['c'] & wr: req = max(req, t[2])
            if k == 'salu' and 'm0' in w and kind == 'dma': req = max(req, 1)
            if k == 'vst' and e & wr: req = max(req, 2)
            need = max(need, req - d)
        if need > 0: self.nop(need)
    def ins(self, kind, op, ops, wr, rd, mods='', ex=None):
        self._track(wr | rd)
        self._waits(wr | rd)
        self._haz(kind, op, rd, wr, ex)
        self.out.append('    '+op+' '+', '.join(fmt(o) for o in ops)+(' '+mods if mods else ''))
        e = ex
        if kind == 'dot': e = op
        self.h.append((self.pos, kind, wr, e)); self.h = [x for x in self.h if self.pos - x[0] < 24]
        self.pos += 1
    def valu(self, op, d, *src, mods=''):
        kind = 'trans' if op in TRANS else 'valu'
        rd = U(*src); wr = U(d)
        if op.startswith('v_fmac') or op.startswith('v_writelane'): rd |= wr
        if op.startswith('v_cndmask') and len(src) == 2: rd |= {'vcc'}
        if 'dpp' in op or 'row_' in mods or 'quad_perm' in mods: kind = 'dpp'; rd |= wr
        self.ins(kind, op, [d, *src], wr, rd, mods)
    def dot2(self, d, a, b, c):
        self.ins('dot', 'v_dot2_f32_bf16', [d, a, b, c], U(d), U(a, b, c), ex=U(a, b))
    def swap(self, a, b, op='v_swap_b32'):
        self.ins('valu' if op == 'v_swap_b32' else 'perm', op, [a, b], U(a, b), U(a, b))
    def cmp(self, op, d, a, b): self.ins('valu', op, [d, a, b], U(d), U(a, b))
    def rfl(self, d, a): self.ins('rdlane', 'v_readfirstlane_b32', [d, a], U(d), U(a))
    def cvt(self, d, a, b): self.valu('v_cvt_pk_bf16_f32', d, a, b)
    def mfma(self, d, a, b, c):
        self.ins('mfma', 'v_mfma_f32_16x16x32_bf16', [d, a, b, c], U(d), U(a, b, c), ex={'passes': 4, 'ab': U(a, b), 'c': U(c)})
    def salu(self, op, *ops, nodst=False):
        if nodst or op.startswith('s_cmp'): self.ins('salu', op, list(ops), set(), U(*ops))
        else:
            rd = U(*ops[1:]); wr = U(ops[0])
            if 'saveexec' in op: wr |= {'exec'}
            self.ins('salu', op, list(ops), wr, rd)
    def sload(self, d, base, off):
        n = len(regs(d)); op = 's_load_dword'+('' if n == 1 else f'x{n}')
        self.ins('smem', op, [d, base, off], U(d), U(base)); self.lg.append(('smem', U(d)))
    def dsr(self, op, d, a, mods=''):
        self.ins('ds', op, [d, a], U(d), U(a), mods); self.lg.append(('ds', U(d)))
    def dsw(self, op, a, *data, mods=''):
        self.ins('ds', op, [a, *data], set(), U(a, *data), mods); self.lg.append(('ds', set()))
    def bload(self, d, voff, srd, soff, off=0, mods='', op=None):
        n = len(regs(d)); op = op or 'buffer_load_dword'+('' if n == 1 else f'x{n}')
        m = 'offen' + (f' offset:{off}' if off else '') + (' '+mods if mods else '')
        self.ins('vmem', op, [d, voff, srd, soff], U(d), U(voff, srd, soff), m); self.vm.append(U(d))
    def bdma(self, voff, srd, soff, off=0, mods=''):
        m = 'offen' + (f' offset:{off}' if off else '') + ' lds' + (' '+mods if mods else '')
        self.ins('dma', 'buffer_load_dwordx4', [voff, srd, soff], set(), U(voff, srd, soff) | {'m0'}, m); self.vm.append(set())
    def bstore(self, d, voff, srd, soff, off=0, mods=''):
        n = len(regs(d)); op = 'buffer_store_dword'+('' if n == 1 else f'x{n}')
        m = 'offen' + (f' offset:{off}' if off else '') + (' '+mods if mods else '')
        self.ins('vst', op, [d, voff, srd, soff], set(), U(d, voff, srd, soff), m, ex=U(d) if n > 2 else set()); self.vm.append(set())
    def gload(self, d, voff, sbase, off=0):
        n = len(regs(d)); op = 'global_load_dword'+('' if n == 1 else f'x{n}')
        self.ins('vmem', op, [d, voff, sbase], U(d), U(voff, sbase), f'offset:{off}' if off else ''); self.vm.append(U(d))
    def barrier(self):
        self.out.append('    s_barrier'); self.pos += 1
    def simple(self, t):
        self.out.append('    '+t); self.pos += 1
    def label(self, name): self.out.append(name+':')
    def branch(self, op, name): self.out.append(f'    {op} {name}'); self.pos += 1
    def skip_begin(self, op, name):
        self.branch(op, name)
        return (name, self.pos, list(self.h), list(self.vm), list(self.lg))
    def skip_end(self, tok):
        name, p0, h0, vm0, lg0 = tok
        own_vm = [x for x in self.vm if not any(x is y for y in vm0)]
        own_lg = [x for x in self.lg if not any(x is y for y in lg0)]
        assert not any(own_vm), 'loads issued in a skippable block must complete inside it'
        assert not any(x[1] for x in own_lg)
        L = self.pos - p0
        inblock = [x for x in self.h if x[0] >= p0]
        self.h = [(p+L, k, w, e) for (p, k, w, e) in h0] + inblock
        self.vm = vm0; self.lg = lg0
        self.label(name)
    def text(self): return '\n'.join(self.out)+'\n'
```

```python
import sys, math
sys.path.insert(0, 'dev')
from asmlib import Asm, v, s

OPT = dict(st='sc1', prefetch=True, stamp=False)
for a in sys.argv[2:]:
    k, val = a.split('='); OPT[k] = {'0': False, '1': True}.get(val, val)
ST = OPT['st'] if OPT['st'] != 'plain' else ''

Z1 = 0x0000000; UT = 0x0500000; REC = 0x0900000; GG = 0x0B00000; Z2 = 0x0C00000; YY = 0x1100000; STAMP = 0x1500000; WSEND = 0x1600000
LOG2E = 1.4426950408889634
NAME = 'gated_mix__ssm_conv_s4d__spectral_gfnet__prompt'
SRD_WS = s(4, 4); SRD_X = s(8, 4); SRD_B = s(12, 4); SRD_PF = s(16, 4)

a = Asm()

def srd(base, size):
    a.salu('s_mov_b32', s(base+2), size); a.salu('s_mov_b32', s(base+3), 0x20000)

def lane_decode(vi=1, vg=2, sw=3):
    a.valu('v_lshrrev_b32', v(vg), 6, v(0))
    a.valu('v_and_b32', v(vi), 15, v(0))
    a.rfl(s(sw), v(vg))
    a.valu('v_bfe_u32', v(vg), v(0), 4, 2)

def cmat(re, im, a0, st, t, lo=None, hi=None, imneg=None):
    for k in range(4):
        ang = v(a0) if k == 0 else v(t)
        if k == 1: a.valu('v_add_f32', v(t), v(a0), v(st))
        elif k > 1: a.valu('v_add_f32', v(t), v(t), v(st))
        a.valu('v_cos_f32', v(t+1), ang); a.valu('v_sin_f32', v(t+2), ang)
        if lo is None:
            a.cvt(v(re+k), v(t+1), v(t+2)); a.cvt(v(im+k), '-'+v(t+2), v(t+1))
        elif imneg is None:
            a.valu('v_mul_f32', v(t+3), v(lo), v(t+1)); a.valu('v_mul_f32', v(re+k), v(hi), v(t+2))
            a.cvt(v(re+k), v(t+3), v(re+k))
            a.valu('v_mul_f32', v(t+3), v(lo), v(t+2)); a.valu('v_mul_f32', v(im+k), v(hi), v(t+1))
            a.cvt(v(im+k), '-'+v(t+3), v(im+k))
        else:
            a.valu('v_mul_f32', v(t+3), v(lo), v(t+1)); a.valu('v_mul_f32', v(re+k), v(lo), v(t+2))
            a.cvt(v(re+k), v(t+3), v(re+k))
            a.valu('v_mul_f32', v(t+3), v(imneg), v(t+2)); a.valu('v_mul_f32', v(im+k), v(imneg), v(t+1))
            a.cvt(v(im+k), '-'+v(t+3), v(im+k))

def negmat(d, src):
    for k in range(8): a.valu('v_xor_b32', v(d+k), 0x80008000, v(src+k))

def transpose4(b):
    for r in range(4):
        for c in range(r+1, 4): a.swap(v(b+4*r+c), v(b+4*c+r))

def pk(op, d, *src, sel=None, selhi=None, neglo=None, neghi=None):
    n = len(src); m = []
    if sel: m.append('op_sel:['+','.join(map(str, sel))+']')
    if selhi: m.append('op_sel_hi:['+','.join(map(str, selhi))+']')
    if neglo: m.append('neg_lo:['+','.join(map(str, neglo))+']')
    if neghi: m.append('neg_hi:['+','.join(map(str, neghi))+']')
    a.valu(op, v(d, 2), *[v(x, 2) if isinstance(x, int) else x for x in src], mods=' '.join(m))

def tw_pairs(tr, ti, re, im, c, sn):
    pk('v_pk_mul_f32', tr, re, c); pk('v_pk_mul_f32', ti, im, c)
    pk('v_pk_fma_f32', tr, im, sn, tr); pk('v_pk_fma_f32', ti, re, sn, ti, neglo=[1,0,0], neghi=[1,0,0])

def tw_bcast(tr, ti, re, im, T):
    pk('v_pk_mul_f32', tr, re, T, sel=[0,0], selhi=[1,0]); pk('v_pk_mul_f32', ti, im, T, sel=[0,0], selhi=[1,0])
    pk('v_pk_fma_f32', tr, im, T, tr, sel=[0,1,0], selhi=[1,1,1])
    pk('v_pk_fma_f32', ti, re, T, ti, sel=[0,1,0], selhi=[1,1,1], neglo=[1,0,0], neghi=[1,0,0])

def cmul(d, x, m, t):
    pk('v_pk_mul_f32', t, x, m, sel=[0,0], selhi=[1,0])
    pk('v_pk_fma_f32', d, x, m, t, sel=[1,1,0], selhi=[0,1,1], neglo=[1,0,0])

def stamp(idx, sreg=90):
    if not OPT['stamp']: return
    a.simple(f's_memrealtime s[{sreg}:{sreg+1}]'); a.waitcnt(lgkm=0)
    a.valu('v_mov_b32', v(254), s(sreg))
    a.salu('s_lshl_b32', s(sreg+2), s(2), 8); a.salu('s_lshl_b32', s(sreg+3), s(3), 6); a.salu('s_add_u32', s(sreg+2), s(sreg+2), s(sreg+3))
    a.salu('s_add_u32', s(sreg+2), s(sreg+2), STAMP + KIDX*0x40000 + 4*idx)
    a.valu('v_mov_b32', v(255), 0)
    a.bstore(v(254), v(255), SRD_WS, s(sreg+2))

def kernel_begin(name, nwg, idx):
    global KIDX; KIDX = idx
    a.reset(); a.maxv = 0; a.maxs = 0
    a.raw(f'.globl {name}\n.p2align 8\n.type {name},@function\n{name}:')
    a.salu('s_cmp_ge_u32', s(2), nwg); a.branch('s_cbranch_scc1', name+'_end')
    if OPT['stamp']: a.simple('s_memrealtime s[94:95]')
def stamp0():
    if not OPT['stamp']: return
    a.valu('v_mov_b32', v(254), s(94))
    a.salu('s_lshl_b32', s(92), s(2), 8); a.salu('s_lshl_b32', s(93), s(3), 6); a.salu('s_add_u32', s(92), s(92), s(93))
    a.salu('s_add_u32', s(92), s(92), STAMP + KIDX*0x40000)
    a.valu('v_mov_b32', v(255), 0)
    a.bstore(v(254), v(255), SRD_WS, s(92))
DESCS = []
def kernel_end(name):
    a.label(name+'_end'); a.simple('s_endpgm')
    nv = 256 if OPT['stamp'] else a.maxv
    DESCS.append((name, nv, 102 if OPT['stamp'] else max(a.maxs, 16)))

def k1():
    nm = 'k1_kernel'
    kernel_begin(nm, 512, 0)
    a.sload(s(4, 2), s(0, 2), 104); a.sload(s(8, 2), s(0, 2), 0)
    if OPT['prefetch']:
        a.simple('s_getpc_b64 s[16:17]'); a.label('k1_pc')
        a.salu('s_mov_b32', s(18), 'code_end-k1_pc'); a.salu('s_mov_b32', s(19), 0x20000)
        a.salu('s_lshr_b32', s(20), s(2), 3); a.salu('s_lshl_b32', s(20), s(20), 9)
        a.valu('v_and_b32', v(3), 7, v(0)); a.valu('v_lshlrev_b32', v(3), 6, v(3))
        a.bload(v(10), v(3), SRD_PF, s(20))
    lane_decode()
    srd(4, WSEND); srd(8, 0x400000)
    a.salu('s_cmp_ge_u32', s(2), 256); a.branch('s_cbranch_scc1', 'k1_roleA')
    st0 = (a.pos, list(a.h), list(a.vm), list(a.lg))
    k1_F()
    a.simple('s_endpgm')
    a.label('k1_roleA'); a.pos, a.h, a.vm, a.lg = st0
    k1_A()
    kernel_end(nm)

def k1_F():
    L, GW, F16r, F16i, FOr, FOi, NFr, NFi, Gr, Gi, TW, D = 12, 28, 44, 48, 52, 56, 60, 64, 68, 72, 76, 92
    AW, AR, VST = 132, 133, 138
    a.sload(s(12, 2), s(0, 2), 80)
    a.salu('s_and_b32', s(20), s(2), 7); a.salu('s_lshl_b32', s(20), s(20), 5); a.salu('s_lshr_b32', s(21), s(2), 3)
    a.salu('s_add_u32', s(20), s(20), s(21))
    a.salu('s_lshl_b32', s(21), s(3), 9); a.salu('s_add_u32', s(21), s(21), s(20)); a.salu('s_lshl_b32', s(22), s(21), 11)
    a.valu('v_lshrrev_b32', v(3), 1, v(1)); a.valu('v_lshlrev_b32', v(3), 4, v(3)); a.valu('v_lshl_add_u32', v(3), v(2), 9, v(3))
    a.valu('v_and_b32', v(4), 1, v(1)); a.valu('v_lshl_add_u32', v(4), v(4), 19, v(3))
    srd(12, 2048)
    for k in range(4): a.bload(v(L+4*k, 4), v(4), SRD_X, s(22), 128*k)
    for k in range(4): a.bload(v(GW+4*k, 4), v(3), SRD_B, 0, 128*k)
    stamp0()
    a.valu('v_cvt_f32_u32', v(5), v(1)); a.valu('v_cvt_f32_u32', v(6), v(2))
    a.valu('v_mul_f32', v(7), 0.0625, v(5))
    a.valu('v_mul_f32', v(8), v(5), v(6)); a.valu('v_mul_f32', v(8), 0.25, v(8))
    cmat(F16r, F16i, 8, 7, D)
    a.valu('v_fma_f32', v(9), v(7), 0.5, v(8))
    cmat(FOr, FOi, 9, 7, D); negmat(NFr, FOr)
    a.valu('v_mul_f32', v(9), 0.0625, v(8)); a.valu('v_mul_f32', v(7), 1.0/512, v(5))
    for k in range(8):
        if k: a.valu('v_add_f32', v(9), v(9), v(7))
        a.valu('v_cos_f32', v(TW+2*k), v(9)); a.valu('v_sin_f32', v(TW+2*k+1), v(9))
    a.valu('v_and_b32', v(7), 7, v(1)); a.valu('v_cvt_f32_u32', v(7), v(7)); a.valu('v_mul_f32', v(7), 0.125, v(7))
    a.valu('v_and_b32', v(8), 1, v(2)); a.valu('v_cvt_f32_u32', v(8), v(8)); a.valu('v_mul_f32', v(8), 4.0, v(8)); a.valu('v_mul_f32', v(8), v(8), v(7))
    a.valu('v_lshrrev_b32', v(9), 3, v(1)); a.valu('v_lshrrev_b32', v(11), 1, v(2))
    a.cmp('v_cmp_eq_u32', 'vcc', v(9), v(11))
    a.valu('v_lshlrev_b32', v(11), 31, v(11))
    a.valu('v_cndmask_b32', v(D+4), 0, 1.0, 'vcc')
    a.valu('v_xor_b32', v(D+5), v(D+4), v(11))
    cmat(Gr, Gi, 8, 7, D, lo=D+4, hi=D+5)
    a.salu('s_lshr_b32', s(23), s(3), 1); a.salu('s_and_b32', s(24), s(3), 1); a.salu('s_lshl_b32', s(24), s(24), 3)
    a.valu('v_bfe_u32', v(7), v(1), 2, 1); a.valu('v_xor_b32', v(8), s(23), v(7)); a.valu('v_lshlrev_b32', v(8), 4, v(8))
    a.valu('v_lshl_add_u32', v(8), v(1), 5, v(8)); a.valu('v_lshl_add_u32', v(8), v(2), 11, v(8)); a.valu('v_add_u32', v(AW), s(24), v(8))
    a.valu('v_lshrrev_b32', v(11), 1, v(2)); a.valu('v_sub_u32', v(8), 0, v(11))
    a.valu('v_xor_b32', v(9), v(1), v(8)); a.valu('v_add_u32', v(9), v(9), v(11))
    a.valu('v_bfe_u32', v(7), v(9), 2, 1); a.valu('v_and_b32', v(D), 1, v(2)); a.valu('v_xor_b32', v(7), v(7), v(D))
    a.valu('v_lshlrev_b32', v(7), 4, v(7)); a.valu('v_lshl_add_u32', v(9), v(9), 5, v(7))
    a.valu('v_xor_b32', v(7), 512, v(8)); a.valu('v_add_u32', v(7), v(7), v(11))
    a.salu('s_lshl_b32', s(25), s(3), 2)
    a.valu('v_lshl_add_u32', v(AR+4), v(7), 4, v(9)); a.valu('v_and_b32', v(AR+4), 0x3fff, v(AR+4))
    a.valu('v_mul_lo_u32', v(D), v(7), s(25)); a.valu('v_add_u32', v(9), v(9), v(D))
    for nn in range(4):
        a.valu('v_and_b32', v(AR+nn), 0x3fff, v(9))
        if nn < 3: a.valu('v_add_u32', v(9), v(9), v(7))
    a.valu('v_and_b32', v(7), 7, v(1)); a.valu('v_mul_u32_u24', v(7), 33, v(7)); a.valu('v_add_u32', v(7), v(7), v(11))
    a.valu('v_lshlrev_b32', v(7), 14, v(7)); a.valu('v_lshrrev_b32', v(8), 3, v(1)); a.valu('v_lshl_add_u32', v(7), v(8), 5, v(7))
    a.valu('v_and_b32', v(8), 1, v(2)); a.valu('v_lshl_add_u32', v(VST), v(8), 4, v(7))
    a.salu('s_lshl_b32', s(26), s(20), 6); a.salu('s_lshl_b32', s(27), s(3), 17); a.salu('s_add_u32', s(27), s(27), s(26))
    if Z1: a.salu('s_add_u32', s(26), s(26), Z1); a.salu('s_add_u32', s(27), s(27), Z1)
    transpose4(L)
    stamp(1)
    for r in range(4):
        a.mfma(v(D+8*r, 4), v(L+4*r, 4), v(F16r, 4), 0); a.mfma(v(D+8*r+4, 4), v(L+4*r, 4), v(F16i, 4), 0)
    for k in range(4):
        for r in range(4): a.dot2(v(5+r), v(L+4*r+k), v(GW+4*k+r), 0 if k == 0 else v(5+r))
    T = GW
    a.valu('v_add_f32', v(5), v(5), v(6)); a.valu('v_add_f32', v(7), v(7), v(8)); a.valu('v_add_f32', v(5), v(5), v(7))
    for r in range(4):
        for hb in range(2):
            t = T + 4*((2*r+hb) % 4)
            tw_bcast(t, t+2, D+8*r+2*hb, D+8*r+4+2*hb, TW+2*(4*hb+r))
            for rb in range(2): a.cvt(v(L+8*rb+4*(r & 1)+2*hb+(r >> 1)), v(t+rb), v(t+2+rb))
    for rb in range(2):
        for c, (f0, f1, fn) in enumerate([(F16r, FOr, NFr), (F16i, FOi, NFi)]):
            a.mfma(v(D+16*rb+8*c, 4), v(f0, 4), v(L+8*rb, 4), 0)
    for rb in range(2):
        for c, (f0, f1, fn) in enumerate([(F16r, FOr, NFr), (F16i, FOi, NFi)]):
            d = D+16*rb+8*c
            a.mfma(v(d+4, 4), v(fn, 4), v(L+8*rb+4, 4), v(d, 4)); a.mfma(v(d, 4), v(f1, 4), v(L+8*rb+4, 4), v(d, 4))
    a.valu('v_add_f32_dpp', v(5), v(5), v(5), mods='quad_perm:[2,3,0,1] row_mask:0xf bank_mask:0xf')
    a.valu('v_add_f32_dpp', v(5), v(5), v(5), mods='row_ror:4 row_mask:0xf bank_mask:0xf')
    a.valu('v_add_f32_dpp', v(5), v(5), v(5), mods='row_ror:8 row_mask:0xf bank_mask:0xf')
    for t in range(2):
        for r in range(4):
            p = T + 2*(4*t+r)
            for rb in range(2): a.cvt(v(p+rb), v(D+16*rb+4*t+r), v(D+16*rb+8+4*t+r))
            a.dsw('ds_write_b64', v(AW), v(p, 2), mods=f'offset:{512*r+8192*t}')
    a.valu('v_mov_b32', v(6), v(5)); a.swap(v(5), v(6), 'v_permlane16_swap_b32'); a.valu('v_add_f32', v(5), v(5), v(6))
    a.valu('v_mov_b32', v(6), v(5)); a.swap(v(5), v(6), 'v_permlane32_swap_b32'); a.valu('v_add_f32', v(5), v(5), v(6))
    a.waitcnt(lgkm=0); a.barrier()
    for nn in range(4): a.dsr('ds_read_b128', v(L+4*nn, 4), v(AR+nn))
    a.salu('s_cmp_eq_u32', s(3), 3)
    tok = a.skip_begin('s_cbranch_scc0', 'k1F_no16')
    a.dsr('ds_read_b128', v(T, 4), v(AR+4))
    a.mfma(v(D+32, 4), v(T, 4), v(Gr, 4), 0); a.mfma(v(D+36, 4), v(T, 4), v(Gi, 4), 0)
    a.salu('s_add_u32', s(28), s(26), 32*16384)
    for r in range(4): a.cvt(v(T+r), v(D+32+r), v(D+36+r))
    a.salu('s_mov_b32', 'exec_hi', 0)
    a.bstore(v(T, 4), v(VST), SRD_WS, s(28), mods=ST)
    a.salu('s_mov_b64', 'exec', -1)
    a.skip_end(tok)
    for nn in range(4):
        a.mfma(v(D+8*nn, 4), v(L+4*nn, 4), v(Gr, 4), 0); a.mfma(v(D+8*nn+4, 4), v(L+4*nn, 4), v(Gi, 4), 0)
    a.cvt(v(5), v(5), v(5)); a.valu('v_lshlrev_b32', v(5), 16, v(5)); a.valu('v_mul_f32', v(5), -LOG2E, v(5))
    a.valu('v_exp_f32', v(5), v(5)); a.valu('v_add_f32', v(5), 1.0, v(5)); a.valu('v_rcp_f32', v(5), v(5))
    a.cvt(v(5), v(5), v(5)); a.valu('v_lshlrev_b32', v(5), 16, v(5))
    a.salu('s_lshl_b32', s(29), s(21), 2); a.salu('s_add_u32', s(29), s(29), GG)
    a.valu('v_lshlrev_b32', v(6), 10, v(1))
    for nn in range(4):
        for r in range(4): a.cvt(v(T+4+4*nn+r), v(D+8*nn+r), v(D+8*nn+4+r))
        a.bstore(v(T+4+4*nn, 4), v(VST), SRD_WS, s(27), mods=ST)
        if nn < 3: a.salu('s_add_u32', s(27), s(27), 32768)
    a.salu('s_mov_b64', 'exec', 3)
    a.bstore(v(5), v(6), SRD_WS, s(29), mods=ST)
    a.salu('s_mov_b64', 'exec', -1)
    stamp(2)
    if OPT['stamp']: a.waitcnt(vm=0); stamp(3)

def k1_A():
    XR, PO, PR = 12, 28, 44
    E1, E8, E256, XC, TT = 48, 52, 56, 60, 64
    PITCH = 544; WSZ = 21*PITCH; IMG = 16*PITCH
    a.sload(s(32, 8), s(0, 2), 8); a.sload(s(40, 4), s(0, 2), 40)
    a.salu('s_sub_u32', s(20), s(2), 256)
    a.salu('s_lshl_b32', s(21), s(20), 2); a.salu('s_add_u32', s(21), s(21), s(3))
    a.salu('s_lshl_b32', s(22), s(21), 1); a.salu('s_and_b32', s(22), s(22), -4)
    a.valu('v_and_b32', v(3), 63, v(0)); a.valu('v_lshlrev_b32', v(4), 2, v(3))
    a.salu('s_lshl_b32', s(23), s(21), 8)
    a.valu('v_add_u32', v(4), s(23), v(4))
    a.salu('s_and_b32', s(24), s(20), 7); a.salu('s_lshl_b32', s(24), s(24), 3); a.salu('s_bfe_u32', s(25), s(20), 0x30003)
    a.salu('s_add_u32', s(24), s(24), s(25))
    a.salu('s_lshr_b32', s(25), s(20), 6); a.salu('s_lshl_b32', s(25), s(25), 2); a.salu('s_add_u32', s(25), s(25), s(3))
    a.salu('s_lshl_b32', s(26), s(24), 16); a.salu('s_lshl_b32', s(27), s(25), 7); a.salu('s_add_u32', s(26), s(26), s(27))
    a.valu('v_lshlrev_b32', v(5), 3, v(1)); a.valu('v_lshl_add_u32', v(5), v(2), 14, v(5))
    for k in range(4): a.gload(v(PR+k), v(4), s(32+2*k, 2))
    a.ins('smem', 's_load_dword', [s(44), s(40, 2), s(22)], {'s44'}, {'s40', 's41', 's22'}); a.lg.append(('smem', {'s44'}))
    a.ins('smem', 's_load_dword', [s(45), s(42, 2), s(22)], {'s45'}, {'s42', 's43', 's22'}); a.lg.append(('smem', {'s45'}))
    for e in range(8):
        if e and e % 2 == 0: a.salu('s_add_u32', s(26), s(26), 4096)
        a.bload(v(XR+2*e, 2), v(5), SRD_X, s(26), 2048*(e & 1))
    stamp0()
    a.salu('s_mul_i32', s(28), s(3), WSZ)
    AWR, AAA, AAC, AB, AIM = 5, 6, 7, 8, 9
    a.valu('v_lshl_add_u32', v(AWR), v(3), 3, s(28))
    a.valu('v_lshl_add_u32', v(11), v(2), 4, s(28))
    a.salu('s_mov_b32', s(29), PITCH)
    a.valu('v_mad_u32_u24', v(AB), v(1), s(29), v(11))
    a.valu('v_and_b32', v(AAC), 7, v(1)); a.valu('v_lshlrev_b32', v(4), 2, v(AAC))
    a.cmp('v_cmp_gt_u32', 'vcc', 8, v(1))
    a.valu('v_mov_b32', v(AAA), 0xCBAAA988); a.valu('v_mov_b32', v(AIM), 0x76543210)
    a.valu('v_cndmask_b32', v(AAA), v(AAA), v(AIM), 'vcc'); a.valu('v_bfe_u32', v(AAA), v(AAA), v(4), 4)
    a.valu('v_mad_u32_u24', v(AAA), v(AAA), s(29), v(11))
    a.valu('v_add_u32', v(AAC), 13, v(AAC)); a.valu('v_mad_u32_u24', v(AAC), v(AAC), s(29), v(11))
    a.salu('s_and_b32', s(30), s(21), 1); a.salu('s_xor_b32', s(30), s(30), 1); a.salu('s_lshl_b32', s(30), s(30), 4)
    a.salu('s_lshl_b32', s(44), s(44), s(30)); a.salu('s_and_b32', s(44), s(44), 0xffff0000)
    a.salu('s_lshl_b32', s(45), s(45), s(30)); a.salu('s_and_b32', s(45), s(45), 0xffff0000)
    DT = 4
    a.valu('v_mov_b32', v(DT), LOG2E); a.valu('v_mul_f32', v(DT), s(44), v(DT)); a.valu('v_exp_f32', v(DT), v(DT))
    a.cvt(v(DT), v(DT), v(DT)); a.valu('v_lshlrev_b32', v(DT), 16, v(DT))
    AR_, AI_ = 68, 70
    for md in range(2):
        def unp(d, src):
            if md == 0: a.valu('v_lshlrev_b32', v(d), 16, v(src))
            else: a.valu('v_and_b32', v(d), 0xffff0000, v(src))
        unp(AR_+md, PR); unp(AI_+md, PR+1); unp(XC+2*md, PR+2); unp(XC+2*md+1, PR+3)
        a.valu('v_mul_f32', v(AR_+md), LOG2E, v(AR_+md)); a.valu('v_exp_f32', v(AR_+md), v(AR_+md))
        a.valu('v_mul_f32', v(AI_+md), v(AI_+md), v(DT)); a.valu('v_mul_f32', v(AI_+md), 1/(2*math.pi), v(AI_+md))
    a.cvt(v(TT), v(AR_), v(AR_+1))
    a.valu('v_add_f32', v(TT+2), v(DT), v(DT))
    a.valu('v_lshlrev_b32', v(AR_), 16, v(TT)); a.valu('v_and_b32', v(AR_+1), 0xffff0000, v(TT))
    for md in range(2):
        a.valu('v_mul_f32', v(AR_+md), v(AR_+md), v(DT)); a.valu('v_mul_f32', v(AR_+md), -LOG2E, v(AR_+md))
        pk('v_pk_mul_f32', XC+2*md, XC+2*md, TT+2, sel=[0,0], selhi=[1,0])
    for E, mul in ((E1, 1.0), (E8, 8.0), (E256, 256.0)):
        for md in range(2):
            if mul != 1.0:
                a.valu('v_mul_f32', v(TT), mul, v(AR_+md)); a.valu('v_mul_f32', v(TT+1), mul, v(AI_+md))
                a.valu('v_exp_f32', v(TT), v(TT)); a.valu('v_fract_f32', v(TT+1), v(TT+1))
            else:
                a.valu('v_exp_f32', v(TT), v(AR_+md)); a.valu('v_fract_f32', v(TT+1), v(AI_+md))
            a.valu('v_cos_f32', v(E+2*md), v(TT+1)); a.valu('v_sin_f32', v(E+2*md+1), v(TT+1))
            pk('v_pk_mul_f32', E+2*md, E+2*md, TT, sel=[0,0], selhi=[1,0])
    stamp(1)
    PKD = [72, 74]; pkc = [0]
    def putrow(row, src, negim=False):
        p = PKD[pkc[0] & 1]; pkc[0] += 1
        for md in range(2): a.cvt(v(p+md), v(src+2*md), ('-' if negim else '')+v(src+2*md+1))
        a.dsw('ds_write_b64', v(AWR), v(p, 2), mods=f'offset:{row*PITCH}')
    def cm(d, x, m):
        for md in range(2): pk('v_pk_mul_f32', TT+2*md, x+2*md, m+2*md, sel=[0,0], selhi=[1,0])
        for md in range(2): pk('v_pk_fma_f32', d+2*md, x+2*md, m+2*md, TT+2*md, sel=[1,1,0], selhi=[0,1,1], neglo=[1,0,0])
    Y = [76+4*k for k in range(6)]
    a.valu('v_mov_b32', v(72), 0x3f80); a.valu('v_mov_b32', v(73), 0x3f80)
    a.dsw('ds_write_b64', v(AWR), v(72, 2)); pkc[0] = 1
    putrow(1, E1); putrow(8, E256)
    y2, y4, y6, ya, yb, yc = Y
    cm(y2, E1, E1); putrow(2, y2)
    cm(ya, y2, E1); putrow(3, ya)
    cm(y4, y2, y2); putrow(4, y4)
    cm(ya, y4, E1); putrow(5, ya)
    cm(y6, y4, y2); putrow(6, y6)
    cm(ya, y6, E1); putrow(7, ya)
    cm(ya, E256, y2); putrow(9, ya)
    cm(yb, E256, y4); putrow(10, yb)
    cm(ya, E256, y6); putrow(11, ya)
    cm(yc, E256, E8); putrow(12, yc)
    cm(yb, yb, E256); putrow(13, yb)
    cm(yc, yc, E256); putrow(14, yc)
    cm(ya, yb, E256); putrow(15, ya)
    cm(yc, yc, E256); putrow(16, yc)
    cm(ya, yb, yb); putrow(17, ya)
    for row in (18, 19, 20):
        cm(ya, ya, E256); putrow(row, ya)
    OA = 100
    for ks in range(8): a.dsr('ds_read_b128', v(OA+4*ks, 4), v(AAA), mods=f'offset:{64*ks}')
    for ks in range(8): a.dsr('ds_read_b128', v(OA+32+4*ks, 4), v(AAC), mods=f'offset:{64*ks}')
    for j in range(16):
        if j: cm(XC, XC, E8)
        putrow(j, XC, True)
    OB = 164; DD = 76
    for ks in range(8): a.dsr('ds_read_b128', v(OB+4*ks, 4), v(AB), mods=f'offset:{64*ks}')
    a.salu('s_mov_b32', s(46), 0x05040100); a.salu('s_mov_b32', s(47), 0x07060302)
    a.salu('s_lshl_b32', s(26), s(25), 18); a.salu('s_lshl_b32', s(27), s(24), 6); a.salu('s_add_u32', s(26), s(26), s(27)); a.salu('s_add_u32', s(26), s(26), UT)
    a.valu('v_lshlrev_b32', v(11), 4, v(2)); a.valu('v_lshl_add_u32', v(11), v(1), 14, v(11))
    for cc in range(4):
        for e in range(4): a.valu('v_perm_b32', v(PO+4*cc+e), v(XR+4*e+2+(cc >> 1)), v(XR+4*e+(cc >> 1)), s(46+(cc & 1)))
        a.bstore(v(PO+4*cc, 4), v(11), SRD_WS, s(26), mods=ST)
        if cc < 3: a.salu('s_add_u32', s(26), s(26), 4096)
    Z = XR
    for k in range(4): a.valu('v_mov_b32', v(Z+k), 0)
    a.valu('v_lshl_add_u32', v(AIM), v(3), 4, s(28))
    for j in range(16):
        cm(XC, XC, E8); putrow(j, XC, True)
        ks = j >> 1; t = j & 1
        a.mfma(v(DD+4*t, 4), v(OA+32*t+4*ks, 4), v(OB+4*ks, 4), 0 if ks == 0 else v(DD+4*t, 4))
    a.dsw('ds_write_b128', v(AIM), v(Z, 4), mods=f'offset:{IMG}'); a.dsw('ds_write_b128', v(AIM), v(Z, 4), mods=f'offset:{IMG+1024}')
    for ks in range(8): a.dsr('ds_read_b128', v(OB+4*ks, 4), v(AB), mods=f'offset:{64*ks}')
    AN, AS2 = 16, 17
    a.valu('v_lshrrev_b32', v(18), 1, v(2)); a.valu('v_lshlrev_b32', v(18), 9, v(18)); a.valu('v_lshl_add_u32', v(18), v(1), 4, v(18))
    a.valu('v_and_b32', v(19), 1, v(2)); a.valu('v_lshl_add_u32', v(18), v(19), 3, v(18))
    a.salu('s_add_u32', s(30), s(28), IMG+1088-256); a.valu('v_sub_u32', v(AN), s(30), v(18))
    a.salu('s_add_u32', s(30), s(28), IMG+1152+120); a.valu('v_lshl_add_u32', v(AS2), v(1), 2, s(30))
    a.salu('s_add_u32', s(30), s(28), IMG+1664+60); a.valu('v_lshl_add_u32', v(18), v(1), 1, s(30))
    a.cmp('v_cmp_eq_u32', 'vcc', 0, v(3)); a.valu('v_mov_b32', v(19), s(45)); a.valu('v_cndmask_b32', v(19), 0, v(19), 'vcc')
    a.salu('s_add_u32', s(30), s(28), IMG+64); a.valu('v_mov_b32', v(20), s(30))
    def emit(vv):
        ta, tc = DD+8*vv, DD+8*vv+4
        if vv == 0: a.valu('v_add_f32', v(ta), v(ta), v(19))
        p = 22+8*vv
        a.cvt(v(p), v(ta+3), v(ta+2)); a.cvt(v(p+1), v(ta+1), v(ta))
        a.cvt(v(p+2), v(tc), v(tc+1)); a.cvt(v(p+3), v(tc+2), v(tc+3))
        a.dsw('ds_write_b64', v(AN), v(p, 2), mods=f'offset:{256*(1-vv)}')
        if vv == 1:
            a.cvt(v(p+4), 0, v(ta+3)); a.cvt(v(p+5), v(ta+3), v(ta+3))
            a.salu('s_brev_b64', 'exec', 1)
            a.dsw('ds_write_b64', v(20), v(p+4, 2))
        a.salu('s_mov_b64', 'exec', 0xffff)
        a.dsw('ds_write2_b32', v(AS2), v(p+2), v(p+3), mods=f'offset0:{16*vv} offset1:{16*vv+32}')
        a.salu('s_mov_b32', 'exec_lo', 0xffff0000)
        for r in range(4):
            a.dsw('ds_write_b16' if r % 2 == 0 else 'ds_write_b16_d16_hi', v(18), v(p+2+(r >> 1)), mods=f'offset:{64*r+32*vv}')
        a.salu('s_mov_b64', 'exec', -1)
    for ks in range(8):
        for t in range(2): a.mfma(v(DD+8+4*t, 4), v(OA+32*t+4*ks, 4), v(OB+4*ks, 4), 0 if ks == 0 else v(DD+8+4*t, 4))
        if ks == 1: emit(0)
    emit(1)
    a.dsr('ds_read_b128', v(40, 4), v(AIM), mods=f'offset:{IMG}'); a.dsr('ds_read_b128', v(44, 4), v(AIM), mods=f'offset:{IMG+1024}')
    a.salu('s_lshl_b32', s(30), s(21), 11); a.salu('s_add_u32', s(30), s(30), REC)
    a.valu('v_lshlrev_b32', v(4), 4, v(3))
    a.bstore(v(40, 4), v(4), SRD_WS, s(30), mods=ST); a.bstore(v(44, 4), v(4), SRD_WS, s(30), 1024, mods=ST)
    stamp(2)
    if OPT['stamp']: a.waitcnt(vm=0); stamp(3)
K1_LDS = 4*21*544

def k2():
    nm = 'k2_kernel'
    kernel_begin(nm, 520, 1)
    a.sload(s(4, 2), s(0, 2), 104); a.sload(s(32, 4), s(0, 2), 64)
    lane_decode()
    srd(4, WSEND)
    a.salu('s_cmp_ge_u32', s(2), 256); a.branch('s_cbranch_scc1', 'k2_roleF')
    st0 = (a.pos, list(a.h), list(a.vm), list(a.lg))
    k2_C()
    a.simple('s_endpgm')
    a.label('k2_roleF'); a.pos, a.h, a.vm, a.lg = st0
    k2_F()
    kernel_end(nm)

def k2_C():
    WSZ = 7936; UO = 512; RO = 4608; C1 = 6720
    a.salu('s_and_b32', s(20), s(2), 7); a.salu('s_lshl_b32', s(20), s(20), 5); a.salu('s_lshr_b32', s(21), s(2), 3)
    a.salu('s_add_u32', s(20), s(20), s(21))
    a.salu('s_lshl_b32', s(21), s(20), 2); a.salu('s_add_u32', s(21), s(21), s(3))
    a.salu('s_mul_i32', s(22), s(3), WSZ)
    a.valu('v_and_b32', v(3), 63, v(0)); a.valu('v_lshlrev_b32', v(4), 4, v(3))
    a.salu('s_lshl_b32', s(23), s(21), 12); a.salu('s_add_u32', s(23), s(23), UT)
    a.salu('s_lshl_b32', s(24), s(21), 11); a.salu('s_add_u32', s(24), s(24), REC); a.salu('s_add_u32', s(25), s(24), 2)
    a.salu('s_add_u32', 'm0', s(22), UO)
    for k in range(4): a.bdma(v(4), SRD_WS, s(23), 1024*k)
    a.salu('s_add_u32', 'm0', s(22), RO)
    for k in range(2): a.bdma(v(4), SRD_WS, s(24), 1024*k)
    a.salu('s_add_u32', 'm0', s(22), C1)
    a.bdma(v(4), SRD_WS, s(25))
    a.salu('s_mov_b64', 'exec', 0xff); a.bdma(v(4), SRD_WS, s(25), 1024); a.salu('s_mov_b64', 'exec', -1)
    stamp0()
    ACC, BOX, MID, FB, UB, STP, SOP = 12, 44, 64, 68, 108, 124, 148
    VB, VA16, VA32, VS2, VS3 = 5, 6, 7, 8, 9
    a.valu('v_mov_b32', v(ACC), 0); a.valu('v_mov_b32', v(ACC+1), 0)
    a.valu('v_lshl_add_u32', v(10), v(3), 3, s(22)); a.dsw('ds_write_b64', v(10), v(ACC, 2))
    a.valu('v_lshlrev_b32', v(VB), 5, v(1)); a.valu('v_lshl_add_u32', v(VB), v(2), 4, v(VB)); a.valu('v_add_u32', v(VB), s(22), v(VB))
    a.valu('v_lshlrev_b32', v(10), 3, v(2)); a.valu('v_sub_u32', v(10), v(10), v(1))
    a.valu('v_cvt_f32_i32', v(11), v(10))
    a.valu('v_and_b32', v(VA32), 1, v(1)); a.cmp('v_cmp_eq_u32', 'vcc', 1, v(VA32))
    a.valu('v_mov_b32', v(VA16), C1+1060-512); a.valu('v_mov_b32', v(VA32), RO+1062-512)
    a.valu('v_cndmask_b32', v(VA16), v(VA16), v(VA32), 'vcc'); a.valu('v_lshl_add_u32', v(VA16), v(10), 1, v(VA16))
    a.valu('v_add_u32', v(VA16), s(22), v(VA16)); a.valu('v_subrev_u32', v(VA32), 512, v(VA16))
    a.valu('v_lshlrev_b32', v(10), 2, v(2)); a.valu('v_sub_u32', v(10), v(1), v(10))
    a.salu('s_add_u32', s(26), s(22), RO+1152+96); a.valu('v_lshl_add_u32', v(VS2), v(10), 3, s(26))
    a.salu('s_add_u32', s(26), s(22), RO+1664+48); a.valu('v_lshl_add_u32', v(VS3), v(10), 2, s(26))
    T = FB
    for ctr, lst in ((8.0, [(BOX+4, 3.0), (BOX+12, 4.0), (BOX+16, 5.0)]), (12.0, [(BOX, 2.0)]), (4.0, [(BOX+8, 2.0)]), (12.5, [(MID, 1.5)])):
        for e in range(8): a.valu('v_add_f32', v(T+e), float(e-ctr), v(11))
        for d, w1 in lst:
            a.salu('s_mov_b32', s(27), w1)
            for e in range(8): a.valu('v_sub_f32', v(T+8+e), s(27), '|'+v(T+e)+'|', mods='clamp')
            for k in range(4): a.cvt(v(d+k), v(T+8+2*k), v(T+9+2*k))
    for k in range(4):
        a.valu('v_lshrrev_b32', v(MID+k), 13, v(MID+k)); a.valu('v_and_b32', v(MID+k), 0x10001, v(MID+k))
    a.salu('s_add_u32', s(26), s(22), RO+1152+93*4+2); a.valu('v_mov_b32', v(10), s(26))
    a.waitcnt(vm=0)
    stamp(1)
    def rdU(slot, i, hi): a.dsr('ds_read_b128', v(UB+4*slot, 4), v(VB), mods=f'offset:{512*(i+1)-(48 if hi else 32)}')
    rdU(0, 0, 0); rdU(1, 0, 1)
    for D_ in (2, 3, 4):
        for h in range(2):
            o = 32*(D_-2)+h; d = FB+4*(2*(D_-2)+h)
            a.dsr('ds_read2_b32', v(d, 2), v(VS2), mods=f'offset0:{o+6} offset1:{o+4}'); a.dsr('ds_read2_b32', v(d+2, 2), v(VS2), mods=f'offset0:{o+2} offset1:{o}')
        if D_ == 2: rdU(2, 1, 0); rdU(3, 1, 1)
    for D_ in (4, 5, 6, 7):
        o = 16*(D_-4); d = FB+24+4*(D_-4)
        a.dsr('ds_read2_b32', v(d, 2), v(VS3), mods=f'offset0:{o+3} offset1:{o+2}'); a.dsr('ds_read2_b32', v(d+2, 2), v(VS3), mods=f'offset0:{o+1} offset1:{o}')
    a.dsr('ds_read_u16', v(11), v(10))
    units = []
    for i in range(6):
        units.append((i, 0)); units.append((i, 1))
        if i < 4: units.append((i, 2))
    first = [True]*8
    def acc(T_, A, B):
        a.mfma(v(ACC+4*T_, 4), A, B, 0 if first[T_] else v(ACC+4*T_, 4)); first[T_] = False
    def box(u):
        i, k = units[u]; lo, hi = v(UB+8*(i & 1), 4), v(UB+8*(i & 1)+4, 4); st_ = STP+8*(u % 3)
        (A0, B0), (A1, B1) = [((lo, BOX), (lo, BOX+4)), ((lo, BOX+8), (hi, BOX+4)), ((lo, BOX+12), (hi, BOX+16))][k]
        a.mfma(v(st_, 4), A0, v(B0, 4), 0); a.mfma(v(st_+4, 4), A1, v(B1, 4), 0)
        if (u+1 == len(units) or units[u+1][0] != i) and i+2 < 6:
            rdU(2*(i & 1), i+2, 0); rdU(2*(i & 1)+1, i+2, 1)
    def cv(u, r):
        st_ = STP+8*(u % 3); a.cvt(v(SOP+4*(u % 3)+r), v(st_+r), v(st_+4+r))
    def farlist(u):
        i, k = units[u]
        if k < 2: return [(i+D_, FB+4*(2*(D_-2)+k)) for D_ in (2, 3, 4) if i+D_ < 8]
        return [(i+D_, FB+24+4*(D_-4)) for D_ in (4, 5, 6, 7) if i+D_ < 8]
    NB, NA = UB, BOX
    box(0); box(1)
    for r in range(4): cv(0, r)
    for u in range(len(units)):
        if u+2 < len(units): box(u+2)
        fl = farlist(u)
        for n_, (T_, B) in enumerate(fl):
            acc(T_, v(SOP+4*(u % 3), 4), v(B, 4))
            if u+1 < len(units) and n_ < 2:
                cv(u+1, 2*n_); cv(u+1, 2*n_+1)
        if u+1 < len(units) and len(fl) < 2:
            cv(u+1, 2); cv(u+1, 3)
    NB = FB; NA = BOX
    def rdB(i, d0): a.dsr('ds_read_b128', v(NB+4*i, 4), v(VB), mods=f'offset:{512*(i+1)-32*(d0+1)}')
    def rdA(d, dl):
        base, o = (VA16, 8*(16-dl)) if dl <= 16 else (VA32, 8*(32-dl))
        a.dsr('ds_read2_b32', v(d, 2), v(base), mods=f'offset0:{o} offset1:{o+1}'); a.dsr('ds_read2_b32', v(d+2, 2), v(base), mods=f'offset0:{o+2} offset1:{o+3}')
    rdA(NA, 0); rdA(NA+4, 16); rdA(NA+16, 32)
    for i in range(8): rdB(i, 0)
    for k in range(4): a.valu('v_mul_u32_u24', v(MID+k), v(MID+k), v(11))
    for it in range(8):
        d0 = 2*it; A0 = NA+8*(it & 1); A1 = A0+4
        for i in range(8):
            acc(i, v(A0, 4), v(NB+4*i, 4))
            if i < 7: acc(i+1, v(A1, 4), v(NB+4*i, 4))
            if it == 0:
                if i+2 < 8: acc(i+2, v(NA+16, 4), v(NB+4*i, 4))
                if i+4 < 8: acc(i+4, v(MID, 4), v(NB+4*i, 4))
            if it < 7:
                if i == 0: rdA(NA+8*((it+1) & 1), d0+2); rdA(NA+8*((it+1) & 1)+4, d0+18)
                rdB(i, d0+2)
    stamp(2)
    a.valu('v_and_b32', v(10), 7, v(1)); a.valu('v_lshlrev_b32', v(11), 2, v(2))
    a.valu('v_lshlrev_b32', v(5), 8, v(1)); a.valu('v_add_u32', v(5), s(22), v(5))
    P = FB
    for r in range(4):
        a.valu('v_or_b32', v(6), r, v(11)); a.valu('v_xor_b32', v(6), v(6), v(10)); a.valu('v_lshl_add_u32', v(6+1+r), v(6), 4, v(5))
    for r in range(4):
        for wq in range(4): a.cvt(v(P+4*r+wq), v(ACC+8*wq+r), v(ACC+8*wq+4+r))
        a.dsw('ds_write_b128', v(7+r), v(P+4*r, 4))
    a.valu('v_lshrrev_b32', v(5), 2, v(0)); a.valu('v_lshrrev_b32', v(6), 6, v(0))
    a.valu('v_xor_b32', v(6), v(5), v(6)); a.valu('v_and_b32', v(11), 3, v(0)); a.valu('v_lshlrev_b32', v(10), 2, v(11))
    a.valu('v_lshl_add_u32', v(6), v(6), 4, v(10)); a.valu('v_xor_b32', v(4), 64, v(6))
    a.valu('v_lshlrev_b32', v(11), 4, v(11)); a.valu('v_lshl_add_u32', v(5), v(5), 14, v(11))
    a.salu('s_lshl_b32', s(26), s(20), 6); a.salu('s_add_u32', s(26), s(26), YY)
    a.waitcnt(lgkm=0); a.barrier()
    for n in range(4):
        ad = v(6) if n % 2 == 0 else v(4)
        a.dsr('ds_read2st64_b32', v(ACC+4*n, 2), ad, mods=f'offset0:{4*n} offset1:{4*n+31}')
        a.dsr('ds_read2st64_b32', v(ACC+4*n+2, 2), ad, mods=f'offset0:{4*n+62} offset1:{4*n+93}')
    for n in range(4):
        a.bstore(v(ACC+4*n, 4), v(5), SRD_WS, s(26), mods=ST)
        if n < 3: a.salu('s_add_u32', s(26), s(26), 64*16384)
    stamp(3)
    if OPT['stamp']: a.waitcnt(vm=0); stamp(4)

def k2_F():
    WB = 0; OB_ = 16384
    X, F1r, F1i, F4r, F4i, F16r, F16i, T1c, T1s, T2c, T2s, D, W, TMP, CS = 12, 28, 32, 36, 40, 44, 48, 52, 56, 60, 64, 68, 100, 116, 148
    a.salu('s_sub_u32', s(20), s(2), 256); a.salu('s_and_b32', s(21), s(20), 7); a.salu('s_lshr_b32', s(22), s(20), 3)
    a.salu('s_mul_i32', s(23), s(21), 33); a.salu('s_add_u32', s(23), s(23), s(22))
    a.salu('s_lshl_b32', s(24), s(23), 14); a.salu('s_lshl_b32', s(25), s(3), 3); a.salu('s_add_u32', s(24), s(24), s(25))
    if Z1: a.salu('s_add_u32', s(24), s(24), Z1)
    a.valu('v_lshlrev_b32', v(3), 6, v(1)); a.valu('v_lshl_add_u32', v(3), v(2), 12, v(3))
    for uv in range(2):
        for (dst, sl) in ((0, 0), (2, 2), (4, 1), (6, 3)):
            a.bload(v(X+8*uv+dst, 2), v(3), SRD_WS, s(24), 1024*sl+32*uv)
    a.salu('s_bitcmp1_b32', s(3), 0, nodst=True)
    a.salu('s_cselect_b32', s(12), s(34), s(32)); a.salu('s_cselect_b32', s(13), s(35), s(33)); srd(12, 2048*1026)
    a.salu('s_lshl_b32', s(25), s(22), 4); a.salu('s_sub_u32', s(26), 1010, s(25))
    a.salu('s_bitcmp1_b32', s(3), 1, nodst=True)
    a.salu('s_cselect_b32', s(25), s(26), s(25)); a.salu('s_cselect_b32', s(26), -1, 0); a.salu('s_cselect_b32', s(27), 1, 0)
    a.salu('s_cselect_b32', s(28), -1, 1); a.salu('s_lshl_b32', s(28), s(28), 9)
    a.valu('v_and_b32', v(4), 63, v(0)); a.valu('v_lshl_add_u32', v(4), v(4), 3, s(21))
    a.valu('v_xor_b32', v(4), s(26), v(4)); a.valu('v_add_u32', v(4), s(27), v(4))
    a.salu('s_lshl_b32', s(29), s(3), 12); a.salu('s_mov_b32', s(30), 1026)
    for n in range(4):
        a.valu('v_and_b32', v(5), 2047, v(4)); a.valu('v_mul_u32_u24', v(5), s(30), v(5))
        a.salu('s_add_u32', 'm0', s(29), WB+1024*n)
        if n < 3: a.valu('v_add_u32', v(4), s(28), v(4))
        a.bdma(v(5), SRD_B, s(25))
    stamp0()
    a.valu('v_cvt_f32_u32', v(5), v(1)); a.valu('v_cvt_f32_u32', v(6), v(2)); a.valu('v_cvt_f32_u32', v(9), s(21))
    a.valu('v_mul_f32', v(7), 0.0625, v(5)); a.valu('v_mul_f32', v(8), v(5), v(6)); a.valu('v_mul_f32', v(8), 0.25, v(8))
    cmat(F16r, F16i, 8, 7, D)
    a.valu('v_mul_f32', v(10), v(9), v(5)); a.valu('v_mul_f32', v(10), 1.0/128, v(10)); a.valu('v_add_f32', v(10), v(10), v(8))
    cmat(F4r, F4i, 10, 7, D)
    a.valu('v_mul_f32', v(10), 0.0625, v(10)); a.valu('v_mul_f32', v(7), 0.0625, v(7))
    for r in range(4):
        if r: a.valu('v_add_f32', v(10), v(10), v(7))
        a.valu('v_cos_f32', v(T2c+r), v(10)); a.valu('v_sin_f32', v(T2s+r), v(10))
    a.valu('v_mul_f32', v(7), 8.0, v(5)); a.valu('v_add_f32', v(7), v(7), v(9)); a.valu('v_mul_f32', v(7), 1.0/128, v(7))
    a.valu('v_mul_f32', v(8), v(7), v(6)); a.valu('v_mul_f32', v(8), 4.0, v(8))
    cmat(F1r, F1i, 8, 7, D)
    a.valu('v_mul_f32', v(8), 0.0625, v(8)); a.valu('v_mul_f32', v(7), 0.0625, v(7))
    for r in range(4):
        if r: a.valu('v_add_f32', v(8), v(8), v(7))
        a.valu('v_cos_f32', v(T1c+r), v(8)); a.valu('v_sin_f32', v(T1s+r), v(8))
    a.salu('s_lshl_b32', s(30), s(22), 3); a.salu('s_lshl_b32', s(31), s(3), 1); a.salu('s_add_u32', s(30), s(30), s(31))
    a.valu('v_cvt_f32_u32', v(7), s(30)); a.valu('v_mul_f32', v(7), 1.0/1024, v(7))
    for c in range(2):
        if c: a.valu('v_add_f32', v(7), 1.0/1024, v(7))
        a.valu('v_sin_f32', v(CS+2*c), v(7)); a.valu('v_cos_f32', v(CS+2*c+1), v(7))
        a.valu('v_fma_f32', v(CS+2*c), v(CS+2*c), -0.5, 0.5); a.valu('v_mul_f32', v(CS+2*c+1), 0.5, v(CS+2*c+1))
    AW1, AW2, AO, AR, VST = 152, 153, 154, 155, 156
    a.valu('v_lshlrev_b32', v(7), 4, v(1)); a.valu('v_lshl_add_u32', v(7), v(2), 10, v(7))
    a.salu('s_lshl_b32', s(31), s(3), 2); a.valu('v_add_u32', v(AW1), s(31), v(7))
    a.salu('s_sub_u32', s(31), 12+8192, s(31)); a.valu('v_add_u32', v(AW2), s(31), v(7))
    a.salu('s_lshr_b32', s(31), s(3), 1); a.valu('v_bfe_u32', v(7), v(1), 1, 2); a.valu('v_xor_b32', v(7), s(31), v(7))
    a.valu('v_lshlrev_b32', v(7), 4, v(7)); a.valu('v_add_u32', v(7), v(7), v(3))
    a.salu('s_and_b32', s(31), s(3), 1); a.salu('s_lshl_b32', s(31), s(31), 3); a.salu('s_add_u32', s(31), s(31), OB_)
    a.valu('v_add_u32', v(AO), s(31), v(7)); a.valu('v_xor_b32', v(AO+3), 32, v(AO))
    a.valu('v_bfe_u32', v(7), v(0), 3, 2); a.valu('v_xor_b32', v(7), v(7), v(0)); a.valu('v_lshlrev_b32', v(AR), 4, v(7))
    a.valu('v_lshrrev_b32', v(7), 2, v(0)); a.salu('s_mov_b32', s(31), 16896); a.valu('v_mul_u32_u24', v(7), s(31), v(7))
    a.valu('v_and_b32', v(8), 3, v(0)); a.valu('v_lshl_add_u32', v(VST), v(8), 4, v(7))
    a.salu('s_lshl_b32', s(36), s(23), 6); a.salu('s_add_u32', s(36), s(36), Z2)
    for uv in range(2):
        a.swap(v(X+8*uv+1), v(X+8*uv+4)); a.swap(v(X+8*uv+3), v(X+8*uv+6))
    stamp(1)
    def stage(dataA, Mr, Mi):
        for t in range(4):
            for c, M in enumerate((Mr, Mi)):
                if dataA: a.mfma(v(D+8*t+4*c, 4), v(X+4*t, 4), v(M, 4), 0)
                else: a.mfma(v(D+8*t+4*c, 4), v(M, 4), v(X+4*t, 4), 0)
    def twid(Tc, Ts):
        for t in range(4):
            for h in range(2):
                tt = TMP+4*((2*t+h) % 4)
                tw_pairs(tt, tt+2, D+8*t+2*h, D+8*t+4+2*h, Tc+2*h, Ts+2*h)
                for e in range(2): a.cvt(v(X+4*t+2*h+e), v(tt+e), v(tt+2+e))
    stage(True, F1r, F1i); twid(T1c, T1s); stage(False, F16r, F16i)
    a.waitcnt(vm=0); a.barrier()
    stamp(2)
    for arr in range(4):
        ad = v(AW1) if arr < 2 else v(AW2); o = 16*(arr & 1)
        for h in range(2): a.dsr('ds_read2st64_b32', v(W+4*arr+2*h, 2), ad, mods=f'offset0:{o+2*h} offset1:{o+2*h+1}')
    for c in range(2):
        for h in range(2):
            b = TMP+16*h
            w1r, w1i, w2r, w2i, dr, di, br, bi = b, b+2, b+4, b+6, b+8, b+10, b+12, b+14
            for arr in range(4):
                hi = (c == 1) if arr < 2 else (c == 0)
                for e in range(2):
                    if hi: a.valu('v_and_b32', v(b+2*arr+e), 0xffff0000, v(W+4*arr+2*h+e))
                    else: a.valu('v_lshlrev_b32', v(b+2*arr+e), 16, v(W+4*arr+2*h+e))
            pk('v_pk_add_f32', dr, w1r, w2r, neglo=[0,1], neghi=[0,1]); pk('v_pk_add_f32', di, w1i, w2i)
            K = CS+2*c
            pk('v_pk_fma_f32', w2r, dr, K, w2r, sel=[0,0,0], selhi=[1,0,1])
            pk('v_pk_fma_f32', w2i, di, K, w2i, sel=[0,0,0], selhi=[1,0,1], neglo=[0,0,1], neghi=[0,0,1])
            pk('v_pk_fma_f32', w1r, dr, K, w1r, sel=[0,0,0], selhi=[1,0,1], neglo=[1,0,0], neghi=[1,0,0])
            pk('v_pk_fma_f32', w1i, di, K, w1i, sel=[0,0,0], selhi=[1,0,1], neglo=[1,0,0], neghi=[1,0,0])
            pk('v_pk_mul_f32', br, di, K, sel=[0,1], selhi=[1,1], neglo=[1,0], neghi=[1,0])
            pk('v_pk_mul_f32', bi, dr, K, sel=[0,1], selhi=[1,1])
            Ur, Ui, Vr, Vi = D+8*c+2*h, D+8*c+4+2*h, D+16+8*c+2*h, D+16+8*c+4+2*h
            N = dict(neglo=[1,0,0], neghi=[1,0,0])
            pk('v_pk_mul_f32', dr, w2r, Ur); pk('v_pk_mul_f32', di, w2r, Ui)
            pk('v_pk_fma_f32', dr, w2i, Ui, dr, **N); pk('v_pk_fma_f32', di, w2i, Ur, di)
            pk('v_pk_mul_f32', w2r, w1r, Vr); pk('v_pk_mul_f32', w2i, w1r, Vi)
            pk('v_pk_fma_f32', dr, br, Vr, dr); pk('v_pk_fma_f32', di, br, Vi, di)
            pk('v_pk_fma_f32', w2r, w1i, Vi, w2r, **N); pk('v_pk_fma_f32', w2i, w1i, Vr, w2i)
            pk('v_pk_fma_f32', dr, bi, Vi, dr, **N); pk('v_pk_fma_f32', di, bi, Vr, di)
            pk('v_pk_fma_f32', w2r, br, Ur, w2r, **N); pk('v_pk_fma_f32', w2i, br, Ui, w2i, **N)
            pk('v_pk_fma_f32', w2r, bi, Ui, w2r); pk('v_pk_fma_f32', w2i, bi, Ur, w2i, **N)
            for e in range(2):
                a.cvt(v(X+4*c+2*h+e), v(dr+e), '-'+v(di+e)); a.cvt(v(X+8+4*c+2*h+e), v(w2r+e), '-'+v(w2i+e))
    stage(True, F16r, F16i); twid(T2c, T2s); stage(False, F4r, F4i)
    for uv in range(2):
        for r in range(4):
            p = X+8*uv+2*r
            for c in range(2): a.cvt(v(p+c), v(D+16*uv+8*c+r), v(D+16*uv+8*c+4+r))
            a.dsw('ds_write_b64', v(AO) if uv == 0 else v(AO+3), v(p, 2), mods=f'offset:{1024*r}')
    a.waitcnt(lgkm=0); a.barrier()
    for n in range(4): a.dsr('ds_read_b128', v(D+4*n, 4), v(AR), mods=f'offset:{OB_+4096*n}')
    for n in range(4):
        a.bstore(v(D+4*n, 4), v(VST), SRD_WS, s(36), mods=ST)
        if n < 3: a.salu('s_add_u32', s(36), s(36), 64*16896)
    stamp(3)
    if OPT['stamp']: a.waitcnt(vm=0); stamp(4)
K2_LDS = 32768

def k3():
    nm = 'k3_kernel'
    kernel_begin(nm, 256, 2)
    L, YV, EX, Gr, Gi, F0r, F0i, F1r, F1i, NFr, NFi, F16r, F16i, Tc, Ts, D, TMP = 12, 28, 44, 48, 52, 56, 60, 64, 68, 72, 76, 80, 84, 88, 96, 104, 136
    AP, AM, AR, OM, MK = 152, 154, 158, 160, 162
    a.sload(s(4, 2), s(0, 2), 104); a.sload(s(8, 2), s(0, 2), 88)
    lane_decode()
    srd(4, WSEND); srd(8, 0x400000)
    a.salu('s_and_b32', s(20), s(2), 7); a.salu('s_lshl_b32', s(20), s(20), 5); a.salu('s_lshr_b32', s(21), s(2), 3)
    a.salu('s_add_u32', s(20), s(20), s(21))
    a.salu('s_mul_i32', s(21), s(20), 16896); a.salu('s_add_u32', s(21), s(21), Z2)
    a.salu('s_lshl_b32', s(22), s(3), 9); a.salu('s_add_u32', s(23), s(22), s(21))
    a.valu('v_and_b32', v(3), 1, v(2)); a.valu('v_mul_u32_u24', v(3), 4*33*64, v(3))
    a.valu('v_lshrrev_b32', v(4), 1, v(2)); a.valu('v_lshl_add_u32', v(3), v(4), 5, v(3))
    a.valu('v_lshrrev_b32', v(5), 1, v(1)); a.valu('v_lshl_add_u32', v(5), v(5), 6, v(3))
    a.valu('v_and_b32', v(6), 1, v(1)); a.valu('v_lshl_add_u32', v(5), v(6), 4, v(5))
    a.salu('s_add_u32', s(24), s(23), 2*2112)
    for k in range(4): a.bload(v(L+4*k, 4), v(5), SRD_WS, s(23+(k >> 1)), 2112*(k & 1))
    a.salu('s_add_u32', s(25), s(21), 2048); a.salu('s_add_u32', s(26), s(25), 2*2112)
    for k in range(4): a.bload(v(EX+k), v(3), SRD_WS, s(25+(k >> 1)), 2112*(k & 1))
    a.salu('s_lshl_b32', s(27), s(20), 14); a.salu('s_lshl_b32', s(28), s(3), 4); a.salu('s_add_u32', s(27), s(27), s(28)); a.salu('s_add_u32', s(27), s(27), YY)
    a.valu('v_lshlrev_b32', v(6), 6, v(1)); a.valu('v_lshl_add_u32', v(6), v(2), 12, v(6))
    for r in range(4): a.bload(v(YV+4*r, 4), v(6), SRD_WS, s(27), 1024*r)
    a.salu('s_add_u32', s(29), s(22), s(20))
    a.salu('s_lshl_b32', s(30), s(29), 2); a.salu('s_add_u32', s(30), s(30), GG); a.salu('s_add_u32', s(31), s(30), 1024)
    a.ins('smem', 's_load_dword', [s(32), s(4, 2), s(30)], {'s32'}, {'s4', 's5', 's30'}); a.lg.append(('smem', {'s32'}))
    a.ins('smem', 's_load_dword', [s(33), s(4, 2), s(31)], {'s33'}, {'s4', 's5', 's31'}); a.lg.append(('smem', {'s33'}))
    stamp0()
    a.valu('v_cvt_f32_u32', v(5), v(1)); a.valu('v_cvt_f32_u32', v(6), v(2))
    a.valu('v_lshrrev_b32', v(7), 2, v(1)); a.valu('v_and_b32', v(8), 1, v(1)); a.valu('v_lshl_add_u32', v(7), v(7), 1, v(8))
    a.valu('v_cvt_f32_u32', v(7), v(7)); a.valu('v_mul_f32', v(7), 0.125, v(7))
    a.valu('v_and_b32', v(8), 1, v(2)); a.valu('v_cvt_f32_u32', v(8), v(8)); a.valu('v_mul_f32', v(8), 4.0, v(8)); a.valu('v_mul_f32', v(8), v(8), v(7))
    a.valu('v_bfe_u32', v(9), v(1), 1, 1); a.cmp('v_cmp_eq_u32', 'vcc', v(9), v(4)); a.valu('v_lshlrev_b32', v(9), 31, v(9))
    a.valu('v_cndmask_b32', v(D+4), 0, 1.0, 'vcc'); a.valu('v_xor_b32', v(D+5), v(D+4), v(9))
    cmat(Gr, Gi, 8, 7, D, lo=D+4, imneg=D+5)
    a.valu('v_mul_f32', v(9), v(5), v(6))
    a.valu('v_mul_f32', v(8), 0.0625, v(9)); a.valu('v_mul_f32', v(7), 0.25, v(5))
    cmat(F0r, F0i, 8, 7, D)
    a.valu('v_mul_f32', v(10), 1.0/32, v(6)); a.valu('v_add_f32', v(8), v(8), v(10)); a.valu('v_add_f32', v(7), 0.125, v(7))
    cmat(F1r, F1i, 8, 7, D); negmat(NFr, F1r)
    a.valu('v_mul_f32', v(8), 0.25, v(9)); a.valu('v_mul_f32', v(7), 0.0625, v(5))
    cmat(F16r, F16i, 8, 7, D)
    for t in range(2):
        a.valu('v_mul_f32', v(7), 1.0/256, v(5))
        if t: a.valu('v_add_f32', v(7), 1.0/512, v(7))
        a.valu('v_mul_f32', v(8), v(7), v(6)); a.valu('v_mul_f32', v(8), 4.0, v(8))
        for r in range(4):
            if r: a.valu('v_add_f32', v(8), v(8), v(7))
            a.valu('v_cos_f32', v(Tc+4*t+r), v(8)); a.valu('v_sin_f32', v(Ts+4*t+r), v(8))
    a.valu('v_and_b32', v(7), 1, v(2)); a.valu('v_lshlrev_b32', v(7), 3, v(7)); a.valu('v_lshl_add_u32', v(7), v(4), 4, v(7))
    a.salu('s_lshl_b32', s(34), s(3), 4); a.valu('v_add_u32', v(8), s(34), v(1))
    def waddr(d, nreg, fx):
        a.valu('v_bfe_u32', v(10), v(nreg), 2, 1); a.valu('v_lshlrev_b32', v(10), 4, v(10)); a.valu('v_xor_b32', v(10), v(10), v(7))
        a.valu('v_lshl_add_u32', v(d), v(nreg), 5, v(10)); a.valu('v_xor_b32', v(d+1), 16, v(d))
    waddr(AP, 8, 0)
    a.valu('v_sub_u32', v(9), 127, v(8)); waddr(AM, 9, 0)
    a.valu('v_add_u32', v(9), 1, v(9)); a.valu('v_and_b32', v(9), 127, v(9)); waddr(AM+2, 9, 0)
    a.valu('v_and_b32', v(9), 3, v(1)); a.valu('v_lshlrev_b32', v(9), 12, v(9)); a.valu('v_lshrrev_b32', v(10), 2, v(1))
    a.valu('v_lshl_add_u32', v(9), v(10), 5, v(9)); a.valu('v_lshl_add_u32', v(9), v(2), 7, v(9))
    a.salu('s_lshr_b32', s(35), s(3), 1); a.valu('v_xor_b32', v(10), v(1), v(2)); a.valu('v_xor_b32', v(10), s(35), v(10)); a.valu('v_and_b32', v(10), 1, v(10))
    a.valu('v_lshl_add_u32', v(9), v(10), 4, v(9)); a.salu('s_and_b32', s(35), s(3), 1); a.salu('s_lshl_b32', s(35), s(35), 3); a.valu('v_add_u32', v(AR), s(35), v(9))
    a.cmp('v_cmp_eq_u32', 'vcc', 0, v(8)); a.valu('v_lshlrev_b32', v(11), 3, v(2)); a.valu('v_cndmask_b32', v(MK), 0, 0.5, 'vcc')
    for rb in range(2):
        a.valu('v_sub_f32', v(OM+rb), 1.0, s(32+rb)); a.cvt(v(OM+rb), v(OM+rb), v(OM+rb)); a.valu('v_lshlrev_b32', v(OM+rb), 16, v(OM+rb))
        a.valu('v_mul_f32', v(OM+rb), 2.0**-20, v(OM+rb))
    a.salu('s_lshr_b32', s(32), s(32), 16)
    a.salu('s_lshl_b32', s(36), s(29), 11); a.salu('s_add_u32', s(37), s(36), 256*2048)
    a.valu('v_lshlrev_b32', v(3), 3, v(1)); a.valu('v_lshl_add_u32', v(3), v(2), 9, v(3))
    transpose4(L)
    stamp(1)
    for r in range(4):
        a.mfma(v(D+8*r, 4), v(Gr, 4), v(L+4*r, 4), 0); a.mfma(v(D+8*r+4, 4), v(Gi, 4), v(L+4*r, 4), 0)
    a.salu('s_cmp_eq_u32', s(3), 3)
    tok = a.skip_begin('s_cbranch_scc0', 'k3_no256')
    a.mfma(v(TMP, 4), v(Gr, 4), v(EX, 4), 0); a.mfma(v(TMP+4, 4), v(Gi, 4), v(EX, 4), 0)
    a.salu('s_mov_b32', s(38), 0x00010001); a.salu('s_mov_b32', s(39), s(38))
    for e in range(2): a.cvt(v(TMP+8+e), v(TMP+e), v(TMP+4+e))
    a.salu('s_mov_b64', 'exec', s(38, 2))
    a.dsw('ds_write_b64', v(11), v(TMP+8, 2), mods='offset:2048')
    a.salu('s_mov_b64', 'exec', -1)
    a.skip_end(tok)
    for c in range(2):
        pk('v_pk_add_f32', TMP+12, D+4*c+2, D+4*c, neglo=[0,1], neghi=[0,1])
        pk('v_pk_fma_f32', D+4*c, TMP+12, MK, D+4*c, sel=[0,0,0], selhi=[1,0,1])
    for r in range(4):
        for sg in (1, 0):
            p = L+4*r+2*sg
            for e in range(2): a.cvt(v(p+e), v(D+8*r+2*sg+e), v(D+8*r+4+2*sg+e))
            if sg == 0: ad, off = AP+(r & 1), 4096*r
            elif r == 0: ad, off = AM+2, 0
            else: ad, off = AM+(r & 1), 4096*(4-r)
            a.dsw('ds_write_b64', v(ad), v(p, 2), mods=f'offset:{off}')
    a.waitcnt(lgkm=0); a.barrier()
    for e in range(2):
        for (dst, sl) in ((0, 0), (2, 2), (4, 1), (6, 3)):
            a.dsr('ds_read_b64', v(L+8*e+dst, 2), v(AR), mods=f'offset:{512*sl+2048*e}')
    for e in range(2):
        a.swap(v(L+8*e+1), v(L+8*e+4)); a.swap(v(L+8*e+3), v(L+8*e+6))
    for e in range(2):
        for rb in range(2):
            for t in range(2):
                for c in range(2):
                    M = [[F0r, F0i], [F1r, F1i] if e == 0 else [NFr, NFi]][t][c]
                    d = v(D+16*rb+8*t+4*c, 4)
                    a.mfma(d, v(L+8*e+4*rb, 4), v(M, 4), 0 if e == 0 else d)
    for rb in range(2):
        for t in range(2):
            for h in range(2):
                tt = TMP+4*((2*t+h) % 4); b = D+16*rb+8*t
                tw_pairs(tt, tt+2, b+2*h, b+4+2*h, Tc+4*t+2*h, Ts+4*t+2*h)
                for e in range(2): a.cvt(v(L+8*rb+4*t+2*h+e), v(tt+e), v(tt+2+e))
    for rb in range(2):
        for t in range(2):
            for c, M in enumerate((F16r, F16i)): a.mfma(v(D+16*rb+8*t+4*c, 4), v(M, 4), v(L+8*rb+4*t, 4), 0)
    stamp(2)
    for rb in range(2):
        for t in range(2):
            for c in range(2):
                for h in range(2):
                    b = D+16*rb+8*t+4*c+2*h
                    ng = dict(neglo=[1,0], neghi=[1,0]) if c else {}
                    pk('v_pk_mul_f32', b, b, OM, sel=[0,rb], selhi=[1,rb], **ng)
        for r in range(4):
            for ch in range(4):
                b = D+16*rb+4*ch+r; a.dot2(v(b), v(YV+4*r+ch), s(32+rb), v(b))
        for r in range(4):
            p = L+8*rb+2*r
            for hh in range(2): a.cvt(v(p+hh), v(D+16*rb+8*hh+r), v(D+16*rb+8*hh+4+r))
            a.bstore(v(p, 2), v(3), SRD_X, s(36+rb), 128*r)
    stamp(3)
    if OPT['stamp']: a.waitcnt(vm=0); stamp(4)
    kernel_end(nm)
K3_LDS = 16384

hdr = open('cdna_kernels/'+NAME+'.s.ref').read().split('; Override launch')[0]
k1(); k2(); k3()
a.label('code_end')
out = hdr
out += f'; @launch kernel=k1_kernel grid=(512,1,1) block=(256,1,1) lds={K1_LDS}\n'
out += f'; @launch kernel=k2_kernel grid=(520,1,1) block=(256,1,1) lds={K2_LDS}\n'
out += f'; @launch kernel=k3_kernel grid=(256,1,1) block=(256,1,1) lds={K3_LDS}\n'
out += '.amdgcn_target "amdgcn-amd-amdhsa--gfx950"\n.text\n' + a.text()
out += '.section .rodata,"a"\n'
for nm, nv, ns in DESCS:
    out += f'''.p2align 6
.amdhsa_kernel {nm}
  .amdhsa_next_free_vgpr {nv}
  .amdhsa_next_free_sgpr {ns}
  .amdhsa_accum_offset {(nv+3)//4*4}
  .amdhsa_group_segment_fixed_size 0
  .amdhsa_kernarg_size 112
  .amdhsa_user_sgpr_count 2
  .amdhsa_user_sgpr_kernarg_segment_ptr 1
  .amdhsa_system_sgpr_workgroup_id_x 1
.end_amdhsa_kernel
'''
open(sys.argv[1], 'w').write(out)
print('written', sys.argv[1], DESCS, 'nops', a.nops, file=sys.stderr)
```

```python
import re

def v(n, c=1): return f"v{n}" if c == 1 else f"v[{n}:{n+c-1}]"
def s(n, c=1): return f"s{n}" if c == 1 else f"s[{n}:{n+c-1}]"

_RE = re.compile(r'^(-|neg\()?\|?([vs])(\d+)\|?\)?$')
_RR = re.compile(r'^(-)?([vs])\[(\d+):(\d+)\]$')
def regs(op):
    if not isinstance(op, str): return set()
    op = op.strip()
    m = _RE.match(op)
    if m: return {m.group(2)+m.group(3)}
    m = _RR.match(op)
    if m: return {m.group(2)+str(k) for k in range(int(m.group(3)), int(m.group(4))+1)}
    if op == 'vcc': return {'vcc'}
    if op in ('exec', 'exec_lo', 'exec_hi'): return {'exec'}
    if op == 'm0': return {'m0'}
    return set()
def U(*ops):
    r = set()
    for o in ops: r |= regs(o)
    return r
def fmt(o):
    if isinstance(o, str): return o
    if isinstance(o, float):
        import struct
        if o in (0.5, -0.5, 1.0, -1.0, 2.0, -2.0, 4.0, -4.0): return repr(o)
        if o == 0.0: return '0'
        return hex(struct.unpack('<I', struct.pack('<f', o))[0])
    if isinstance(o, int):
        return str(o) if -16 <= o <= 64 else hex(o & 0xffffffff)
    raise ValueError(o)

TRANS = ('v_exp_f32', 'v_log_f32', 'v_rcp_f32', 'v_rsq_f32', 'v_sqrt_f32', 'v_sin_f32', 'v_cos_f32')

class Asm:
    def __init__(self):
        self.out = []
        self.reset()
        self.maxv = 0; self.maxs = 0
        self.nops = 0
        self.cap = None
    def reset(self):
        self.pos = 0
        self.h = []
        self.vm = []
        self.lg = []
    def raw(self, t): self.out.append(t)
    def comment(self, t): self.out.append('    ; '+t)
    def _track(self, rs):
        for r in rs:
            if r[0] == 'v' and r[1:].isdigit(): self.maxv = max(self.maxv, int(r[1:])+1)
            if r[0] == 's' and r[1:].isdigit(): self.maxs = max(self.maxs, int(r[1:])+1)
    def _waits(self, touched):
        n = None
        for k in range(len(self.vm)-1, -1, -1):
            if self.vm[k] & touched: n = len(self.vm)-1-k; break
        m = None
        for k in range(len(self.lg)-1, -1, -1):
            if self.lg[k][1] & touched:
                m = len(self.lg)-1-k
                if any(x[0] == 'smem' for x in self.lg): m = 0
                break
        if n is not None or m is not None: self.waitcnt(vm=n, lgkm=m)
    def waitcnt(self, vm=None, lgkm=None):
        p = []
        if vm is not None:
            vm = min(vm, 63); p.append(f'vmcnt({vm})'); self.vm = self.vm[len(self.vm)-vm:] if vm else []
        if lgkm is not None:
            lgkm = min(lgkm, 15); p.append(f'lgkmcnt({lgkm})'); self.lg = self.lg[len(self.lg)-lgkm:] if lgkm else []
        self.out.append('    s_waitcnt '+' '.join(p)); self.pos += 1
    def nop(self, n):
        while n > 0:
            k = min(n, 16); self.out.append(f'    s_nop {k-1}'); self.pos += k; n -= k; self.nops += k
    def _haz(self, kind, op, rd, wr, ex):
        need = 0
        isvalu = kind in ('valu', 'trans', 'dpp', 'perm', 'rdlane', 'dot')
        for (p, k, w, e) in self.h:
            d = self.pos - p - 1
            req = 0
            pv = k in ('valu', 'trans', 'dpp', 'perm', 'rdlane', 'dot')
            if pv:
                vw = {r for r in w if r[0] == 'v' and r != 'vcc'}
                sw = w - vw
                if kind == 'mfma' and vw & rd: req = max(req, 2)
                if kind in ('dpp', 'perm') and vw & rd: req = max(req, 2)
                if kind == 'rdlane' and vw & rd: req = max(req, 1)
                if k == 'trans' and isvalu and kind != 'trans' and vw & rd: req = max(req, 1)
                if k == 'dot' and (vw & (rd | wr)):
                    if not (kind == 'dot' and e == op and not (vw & ex)): req = max(req, 3)
                if sw & rd:
                    if isvalu: req = max(req, 4 if kind == 'rdlane' else 2)
                    if kind in ('vmem', 'vst', 'dma'): req = max(req, 5)
                    if kind == 'salu': req = max(req, 1)
            if k == 'mfma':
                passes = e['passes']; t = {4: (6, 8, 3), 8: (10, 12, 7)}[passes]
                if kind == 'mfma':
                    if w & ex['ab']: req = max(req, t[1])
                    if w & ex['c'] and w != ex['c']: req = max(req, t[0])
                    if w & wr and w != ex['c']: req = max(req, t[1])
                else:
                    if w & (rd | wr): req = max(req, t[1])
                    if isvalu and e['c'] & wr: req = max(req, t[2])
            if k == 'salu' and 'm0' in w and kind == 'dma': req = max(req, 1)
            if k == 'vst' and e & wr: req = max(req, 2)
            need = max(need, req - d)
        if need > 0: self.nop(need)
    def ins(self, kind, op, ops, wr, rd, mods='', ex=None, post=None):
        if self.cap is not None:
            self.cap.append((kind, op, ops, wr, rd, mods, ex, post)); return
        self._ins(kind, op, ops, wr, rd, mods, ex)
        if post == 'vm': self.vm.append(set(wr))
        elif post: self.lg.append((post, set(wr)))
    def _ins(self, kind, op, ops, wr, rd, mods='', ex=None):
        self._track(wr | rd)
        self._waits(wr | rd)
        self._haz(kind, op, rd, wr, ex)
        self.out.append('    '+op+' '+', '.join(fmt(o) for o in ops)+(' '+mods if mods else ''))
        e = ex
        if kind == 'dot': e = op
        self.h.append((self.pos, kind, wr, e)); self.h = [x for x in self.h if self.pos - x[0] < 24]
        self.pos += 1
    def valu(self, op, d, *src, mods=''):
        kind = 'trans' if op in TRANS else 'valu'
        rd = U(*src); wr = U(d)
        if op.startswith('v_fmac') or op.startswith('v_writelane'): rd |= wr
        if op.startswith('v_cndmask') and len(src) == 2: rd |= {'vcc'}
        if 'dpp' in op or 'row_' in mods or 'quad_perm' in mods: kind = 'dpp'; rd |= wr
        self.ins(kind, op, [d, *src], wr, rd, mods)
    def dot2(self, d, a, b, c):
        self.ins('dot', 'v_dot2_f32_bf16', [d, a, b, c], U(d), U(a, b, c), ex=U(a, b))
    def swap(self, a, b, op='v_swap_b32'):
        self.ins('valu' if op == 'v_swap_b32' else 'perm', op, [a, b], U(a, b), U(a, b))
    def cmp(self, op, d, a, b): self.ins('valu', op, [d, a, b], U(d), U(a, b))
    def rfl(self, d, a): self.ins('rdlane', 'v_readfirstlane_b32', [d, a], U(d), U(a))
    def cvt(self, d, a, b): self.valu('v_cvt_pk_bf16_f32', d, a, b)
    def mfma(self, d, a, b, c):
        self.ins('mfma', 'v_mfma_f32_16x16x32_bf16', [d, a, b, c], U(d), U(a, b, c), ex={'passes': 4, 'ab': U(a, b), 'c': U(c)})
    def salu(self, op, *ops, nodst=False):
        if nodst or op.startswith('s_cmp'): self.ins('salu', op, list(ops), set(), U(*ops))
        else:
            rd = U(*ops[1:]); wr = U(ops[0])
            if 'saveexec' in op: wr |= {'exec'}
            self.ins('salu', op, list(ops), wr, rd)
    def sload(self, d, base, off):
        n = len(regs(d)); op = 's_load_dword'+('' if n == 1 else f'x{n}')
        self.ins('smem', op, [d, base, off], U(d), U(base, off), post='smem')
    def dsr(self, op, d, a, mods=''):
        self.ins('ds', op, [d, a], U(d), U(a), mods, post='ds')
    def dsw(self, op, a, *data, mods=''):
        self.ins('ds', op, [a, *data], set(), U(a, *data), mods, post='ds')
    def bload(self, d, voff, srd, soff, off=0, mods='', op=None):
        n = len(regs(d)); op = op or 'buffer_load_dword'+('' if n == 1 else f'x{n}')
        m = 'offen' + (f' offset:{off}' if off else '') + (' '+mods if mods else '')
        self.ins('vmem', op, [d, voff, srd, soff], U(d), U(voff, srd, soff), m, post='vm')
    def bdma(self, voff, srd, soff, off=0, mods=''):
        m = 'offen' + (f' offset:{off}' if off else '') + (' '+mods if mods else '') + ' lds'
        self.ins('dma', 'buffer_load_dwordx4', [voff, srd, soff], set(), U(voff, srd, soff) | {'m0'}, m, post='vm')
    def bstore(self, d, voff, srd, soff, off=0, mods=''):
        n = len(regs(d)); op = 'buffer_store_dword'+('' if n == 1 else f'x{n}')
        m = 'offen' + (f' offset:{off}' if off else '') + (' '+mods if mods else '')
        self.ins('vst', op, [d, voff, srd, soff], set(), U(d, voff, srd, soff), m, ex=U(d) if n > 2 else set(), post='vm')
    def gload(self, d, voff, sbase, off=0):
        n = len(regs(d)); op = 'global_load_dword'+('' if n == 1 else f'x{n}')
        self.ins('vmem', op, [d, voff, sbase], U(d), U(voff, sbase), f'offset:{off}' if off else '', post='vm')
    def barrier(self):
        self.out.append('    s_barrier'); self.pos += 1
    def simple(self, t):
        self.out.append('    '+t); self.pos += 1
    def label(self, name): self.out.append(name+':')
    def branch(self, op, name): self.out.append(f'    {op} {name}'); self.pos += 1
    def skip_begin(self, op, name):
        self.branch(op, name)
        return (name, self.pos, list(self.h), list(self.vm), list(self.lg))
    def skip_end(self, tok):
        name, p0, h0, vm0, lg0 = tok
        own_vm = [x for x in self.vm if not any(x is y for y in vm0)]
        own_lg = [x for x in self.lg if not any(x is y for y in lg0)]
        assert not any(own_vm), 'loads issued in a skippable block must complete inside it'
        assert not any(x[1] for x in own_lg)
        L = self.pos - p0
        inblock = [x for x in self.h if x[0] >= p0]
        self.h = [(p+L, k, w, e) for (p, k, w, e) in h0] + inblock
        self.vm = vm0; self.lg = lg0
        self.label(name)
    def sched_begin(self):
        assert self.cap is None; self.cap = []
    def sched_end(self, dslat=110):
        L = self.cap; self.cap = None
        n = len(L)
        def dur(x):
            k, op = x[0], x[1]
            if k == 'mfma': return 8
            if k == 'trans' or 'swap' in op: return 8
            if k == 'ds': return 16 if not x[3] else 5
            if k in ('salu', 'smem'): return 4
            if k in ('vmem', 'vst', 'dma'): return 8
            return 4.6
        def lat(p, c, raw):
            kp, kc = p[0], c[0]
            if kp == 'mfma':
                if kc == 'mfma' and p[3] == c[6]['c'] : return 16
                return 44
            if not raw: return dur(p)
            if kp == 'ds': return dslat
            if kp in ('vmem', 'smem'): return 400
            if kc == 'mfma' or kc in ('dpp', 'perm'): return dur(p)+9
            if kp == 'trans': return 13
            if kp == 'dot' and not (kc == 'dot' and not (p[3] & c[6])): return 18
            if kp != 'salu' and any(r[0] == 's' or r == 'vcc' for r in p[3]): return 24
            return dur(p)
        vec = ('valu', 'trans', 'dpp', 'perm', 'rdlane', 'dot', 'mfma', 'ds', 'vmem', 'vst', 'dma')
        rds = [x[4] | ({'exec'} if x[0] in vec else set()) for x in L]
        succ = [[] for _ in range(n)]; npred = [0]*n
        for j in range(n):
            for i in range(j):
                a, b = L[i], L[j]
                raw = bool(a[3] & rds[j]); dep = raw or bool(a[3] & b[3]) or bool(rds[i] & b[3])
                if a[0] == 'mfma' and not (a[3] & (rds[j] | b[3])) and dep:
                    succ[i].append((j, 16 if a[6]['c'] & b[3] else 8)); npred[j] += 1; continue
                if not dep:
                    if a[0] in ('salu', 'smem') and b[0] in ('salu', 'smem'): dep = True
                    elif a[0] == 'ds' and b[0] == 'ds' and (not a[3] or not b[3]): dep = True
                    elif a[0] in ('vmem', 'vst', 'dma') and b[0] in ('vmem', 'vst', 'dma'): dep = True
                if dep: succ[i].append((j, lat(a, b, raw))); npred[j] += 1
        prio = [0]*n
        for i in range(n-1, -1, -1):
            prio[i] = dur(L[i]) + max([l + prio[j] - dur(L[i]) for j, l in succ[i]] + [0])
        ready_t = [0]*n; done = [False]*n; t = 0; pipe = 0; order = []
        avail = [i for i in range(n) if npred[i] == 0]
        while avail:
            def start(i): return max(t, ready_t[i], pipe if (L[i][0] == 'mfma' or L[i][1].startswith('v_pk_')) else 0)
            now = [i for i in avail if start(i) <= t+1]
            if now: i = max(now, key=lambda i: (prio[i], -i))
            else: i = min(avail, key=lambda i: (start(i), -prio[i], i))
            st = start(i); avail.remove(i); order.append(i)
            if L[i][0] == 'mfma': pipe = st+16
            t = st+dur(L[i])
            for j, l in succ[i]:
                ready_t[j] = max(ready_t[j], st+l); npred[j] -= 1
                if npred[j] == 0: avail.append(j)
        assert len(order) == n
        for i in order: self.ins(*L[i])
        return t
    def text(self): return '\n'.join(self.out)+'\n'
```

```python
import sys, math
sys.path.insert(0, 'dev')
from asmlib import Asm, v, s

OPT = dict(prefetch=True, stamp=False, sched=True, prio=True, yfirst=False, ab='', wpf='late', gpos='set2', sleep='0', flupos='Y', fs='64', umode='ut', xpf='early', g0='4', gs='5', polls='ser', pad='256', tlb='0', afirst='0', utfirst=True, p2s=True, wdec=True, tabfirst=True)
for a_ in sys.argv[2:]:
    k_, val = a_.split('='); OPT[k_] = {'0': False, '1': True}.get(val, val)
ST = 'sc1'; LD = 'sc1'

IS = 16384 + int(OPT['pad']); US = 4096 + int(OPT['pad'])
Z1 = 0x0000000; UT = 0x0480000; Z2 = 0x0900000; YY = 0x0D80000; C1 = 0x1200000; C2 = 0x1202000
FL1 = 0x1204000; FLU = 0x1208000; FL2 = 0x120C000; FLY = 0x1210000; EPOCH = 0x1214000; STAMP = 0x1300000; WSEND = 0x1400000
LOG2E = 1.4426950408889634
NAME = 'gated_mix__ssm_conv_s4d__spectral_gfnet__prompt'
KN = NAME+'_kernel'
SRD_WS = s(4, 4); SRD_X = s(8, 4); SRD_B = s(12, 4); SRD_PF = s(16, 4); SRD_DBG = s(48, 4); SRD_C = s(52, 4)
TAG = 56; SPIN = 57
DG = OPT['umode'] == 'dg'; U2 = OPT['umode'] == 'u2'
FS = int(OPT['fs']); FSL = FS.bit_length()-1
JX = 5

a = Asm()
_rg = [0]
def sb():
    _rg[0] += 1
    if OPT['sched'] and str(_rg[0]) not in str(OPT.get('nosched', '')).split(','): a.sched_begin()
def se():
    if a.cap is not None: a.sched_end()
def prio(n):
    if OPT['prio']: a.simple(f's_setprio {n}')

def srd(base, size):
    a.salu('s_mov_b32', s(base+2), size); a.salu('s_mov_b32', s(base+3), 0x20000)

def cmat(re, im, a0, st, t, lo=None, hi=None, imneg=None):
    for k in range(4):
        u = t+4*k
        ang = v(a0) if k == 0 else v(u)
        if k == 1: a.valu('v_add_f32', v(u), v(a0), v(st))
        elif k > 1: a.valu('v_add_f32', v(u), v(u-4), v(st))
        a.valu('v_cos_f32', v(u+1), ang); a.valu('v_sin_f32', v(u+2), ang)
        if lo is None:
            a.cvt(v(re+k), v(u+1), v(u+2)); a.cvt(v(im+k), '-'+v(u+2), v(u+1))
        else:
            f1, f2, f3, f4 = (lo, hi, lo, hi) if imneg is None else (lo, lo, imneg, imneg)
            a.valu('v_mul_f32', v(u+3), v(f1), v(u+1)); a.valu('v_mul_f32', v(re+k), v(f2), v(u+2))
            a.cvt(v(re+k), v(u+3), v(re+k))
            a.valu('v_mul_f32', v(u+3), v(f3), v(u+2)); a.valu('v_mul_f32', v(im+k), v(f4), v(u+1))
            a.cvt(v(im+k), '-'+v(u+3), v(im+k))
def trig(c, sn, n, a0, st, cs=1):
    for k in range(n):
        if k: a.valu('v_add_f32', v(a0), v(a0), v(st))
        a.valu('v_cos_f32', v(c+cs*k), v(a0)); a.valu('v_sin_f32', v(sn+cs*k), v(a0))
def negmat(d, src):
    for k in range(8): a.valu('v_xor_b32', v(d+k), 0x80008000, v(src+k))
def transpose4(b):
    for r in range(4):
        for c in range(r+1, 4): a.swap(v(b+4*r+c), v(b+4*c+r))
def pk(op, d, *src, sel=None, selhi=None, neglo=None, neghi=None):
    m = []
    if sel and sel[0] == 0 and sel[1] == 1:
        sw = lambda x: [x[1], x[0]]+list(x[2:]) if x else x
        src = sw(list(src)); sel, selhi, neglo, neghi = sw(sel), sw(selhi), sw(neglo), sw(neghi)
    if sel: m.append('op_sel:['+','.join(map(str, sel))+']')
    if selhi: m.append('op_sel_hi:['+','.join(map(str, selhi))+']')
    if neglo: m.append('neg_lo:['+','.join(map(str, neglo))+']')
    if neghi: m.append('neg_hi:['+','.join(map(str, neghi))+']')
    a.valu(op, v(d, 2), *[v(x, 2) if isinstance(x, int) else x for x in src], mods=' '.join(m))
N0 = dict(neglo=[1,0,0], neghi=[1,0,0])
def tw_pairs(tr, ti, re, im, c, sn):
    pk('v_pk_mul_f32', tr, re, c); pk('v_pk_mul_f32', ti, im, c)
    pk('v_pk_fma_f32', tr, im, sn, tr); pk('v_pk_fma_f32', ti, re, sn, ti, **N0)
def tw_bcast(tr, ti, re, im, T):
    pk('v_pk_mul_f32', tr, re, T, sel=[0,0], selhi=[1,0]); pk('v_pk_mul_f32', ti, im, T, sel=[0,0], selhi=[1,0])
    pk('v_pk_fma_f32', tr, im, T, tr, sel=[0,1,0], selhi=[1,1,1])
    pk('v_pk_fma_f32', ti, re, T, ti, sel=[0,1,0], selhi=[1,1,1], **N0)

def smul(d, x, y): a.valu('v_mul_f32', v(d), v(x), v(y))
def sfma(d, x, y, neg=False):
    if neg: a.valu('v_fma_f32', v(d), '-'+v(x), v(y), v(d))
    else: a.valu('v_fmac_f32', v(d), v(x), v(y))
def op2(op, d, x, y, neg=False):
    if OPT['p2s']:
        for e in range(2):
            if op == 'mul': smul(d+e, x+e, y+e)
            else: sfma(d+e, x+e, y+e, neg)
    elif op == 'mul': pk('v_pk_mul_f32', d, x, y)
    else: pk('v_pk_fma_f32', d, x, y, d, **(N0 if neg else {}))

STN = []
def stamp(name):
    if not OPT['stamp']: return
    k = len(STN); STN.append(name)
    a.simple(f's_memrealtime s[{60+2*k}:{61+2*k}]'); a.lg.append(('smem', {f's{60+2*k}', f's{61+2*k}'}))
def stamps_out(role, lo, hi):
    if not OPT['stamp']: return
    stamp('end'); a.waitcnt(lgkm=0)
    a.salu('s_mov_b64', 'exec', 1)
    a.salu('s_lshl_b32', s(58), s(2), 9); a.salu('s_lshl_b32', s(59), s(3), 7); a.salu('s_add_u32', s(58), s(58), s(59))
    a.salu('s_add_u32', s(58), s(58), STAMP)
    a.valu('v_mov_b32', v(1), 0)
    for k in range(len(STN)):
        a.valu('v_mov_b32', v(2), s(60+2*k)); a.bstore(v(2), v(1), SRD_WS, s(58), 4*k)
    a.raw(f'; STAMPS {role} {lo} {hi} ' + ' '.join(STN))
    del STN[1:]

_lab = [0]
def lab(p): _lab[0] += 1; return f'{p}_{_lab[0]}'
def wave0_begin():
    a.salu('s_cmp_eq_u32', s(3), 0); return a.skip_begin('s_cbranch_scc0', lab('nw0'))

def tag_load(vt, vz):
    a.valu('v_mov_b32', v(vz), 0); a.bload(v(vt), v(vz), SRD_DBG, 0, mods=LD)
def get_tag(vt, vz):
    a.rfl(s(TAG), v(vt))
    L = lab('tag'); D_ = lab('tagok')
    a.salu('s_mov_b32', s(SPIN), 0x20000)
    vm0 = list(a.vm)
    a.label(L)
    a.salu('s_cmp_lg_u32', s(TAG), 0); a.branch('s_cbranch_scc1', D_)
    a.bload(v(vt), v(vz), SRD_DBG, 0, mods=LD); a.waitcnt(vm=0); a.rfl(s(TAG), v(vt))
    a.salu('s_sub_u32', s(SPIN), s(SPIN), 1); a.branch('s_cbranch_scc0', L)
    a.label(D_); a.vm = vm0
def publish(flag, sidx, vt, vz, younger, first):
    a.waitcnt(vm=younger); a.barrier()
    if first: get_tag(vt, vz)
    tok = wave0_begin()
    a.salu('s_lshl_b32', s(58), s(sidx), FSL); a.salu('s_add_u32', s(58), s(58), flag)
    a.valu('v_mov_b32', v(vt), s(TAG)); a.valu('v_mov_b32', v(vz), 0)
    a.salu('s_mov_b64', 'exec', 1); a.bstore(v(vt), v(vz), SRD_WS, s(58), mods=ST); a.salu('s_mov_b64', 'exec', -1)
    a.skip_end(tok)
def poll(flag, n, voff, t, flag1=None):
    if flag1 is None:
        tok = wave0_begin(); a.salu('s_mov_b32', s(58), flag)
    else:
        a.salu('s_cmp_lt_u32', s(3), 2); tok = a.skip_begin('s_cbranch_scc0', lab('nw01'))
        a.salu('s_mul_i32', s(58), s(3), flag1-flag); a.salu('s_add_u32', s(58), s(58), flag)
    a.salu('s_mov_b32', s(SPIN), 0x20000)
    if n > 1: a.salu('s_add_u32', s(59), s(58), 128*FS); a.valu('v_add_u32', v(t+4), 64*FS, v(voff))
    L = lab('poll'); D_ = lab('pollok')
    a.nop(1); a.label(L)
    for k in range(n): a.bload(v(t+k), v(voff) if k % 2 == 0 else v(t+4), SRD_WS, s(58+(k >> 1)), mods=LD)
    for k in range(n): a.valu('v_xor_b32', v(t+k), s(TAG), v(t+k))
    if n == 4: a.valu('v_or3_b32', v(t), v(t), v(t+1), v(t+2)); a.valu('v_or_b32', v(t), v(t), v(t+3))
    a.cmp('v_cmp_ne_u32', 'vcc', 0, v(t))
    a.salu('s_and_b64', 'exec', 'exec', 'vcc'); a.branch('s_cbranch_scc0', D_)
    if int(OPT['sleep']): a.simple(f"s_sleep {int(OPT['sleep'])}")
    a.salu('s_sub_u32', s(SPIN), s(SPIN), 1); a.branch('s_cbranch_scc0', L)
    a.label(D_)
    a.salu('s_mov_b64', 'exec', -1)
    a.skip_end(tok)
    a.barrier()

def kernel():
    a.raw(f'.globl {KN}\n.p2align 8\n.type {KN},@function\n{KN}:')
    a.salu('s_cmp_ge_u32', s(2), 512); a.branch('s_cbranch_scc1', 'k_end')
    stamp('start')
    a.sload(s(4, 2), s(0, 2), 104); a.sload(s(8, 2), s(0, 2), 0); a.sload(s(48, 2), s(0, 2), 96)
    if OPT['prefetch']:
        a.simple('s_getpc_b64 s[16:17]'); a.label('k_pc')
        a.salu('s_mov_b32', s(18), 'code_end-k_pc'); a.salu('s_mov_b32', s(19), 0x20000)
        a.salu('s_lshr_b32', s(20), s(2), 3); a.salu('s_lshl_b32', s(20), s(20), 9)
        a.valu('v_and_b32', v(3), 7, v(0)); a.valu('v_lshlrev_b32', v(3), 6, v(3))
        a.bload(v(10), v(3), SRD_PF, s(20))
    a.valu('v_lshrrev_b32', v(2), 6, v(0)); a.valu('v_and_b32', v(1), 15, v(0)); a.rfl(s(3), v(2)); a.valu('v_bfe_u32', v(2), v(0), 4, 2)
    srd(4, WSEND); srd(8, 0x400000); srd(48, 256)
    if int(OPT['afirst']): a.salu('s_xor_b32', s(2), s(2), 256)
    a.salu('s_cmp_ge_u32', s(2), 256); a.branch('s_cbranch_scc1', 'k_roleA')
    st0 = (a.pos, list(a.h), list(a.vm), list(a.lg))
    roleF()
    a.simple('s_endpgm')
    a.label('k_roleA'); a.pos, a.h, a.vm, a.lg = st0
    roleA()
    a.label('k_end'); a.simple('s_endpgm')

F16r, F16i, GATE = 44, 48, 11
AZ, AO, AR2, VST2, VC, W256, AXW = 200, 202, 204, 205, 206, 208, 216
XB = 32768
def roleF():
    a.sload(s(12, 2), s(0, 2), 80); a.sload(s(32, 4), s(0, 2), 64); a.sload(s(36, 2), s(0, 2), 88)
    a.salu('s_and_b32', s(40), s(2), 7); a.salu('s_lshr_b32', s(41), s(2), 3)
    a.salu('s_lshl_b32', s(20), s(40), 5); a.salu('s_add_u32', s(20), s(20), s(41))
    p1(); p2(); p3()
    stamps_out('F', 0, 256)

def wprefetch(wp=32, kap=40, jb=41, t=190, so=31):
    a.salu('s_bitcmp1_b32', s(3), 0, nodst=True)
    a.salu('s_cselect_b32', s(52), s(wp+2), s(wp)); a.salu('s_cselect_b32', s(53), s(wp+3), s(wp+1)); srd(52, 2048*1026)
    a.salu('s_lshl_b32', s(58), s(jb), 6); a.salu('s_add_u32', s(58), s(58), s(kap))
    a.salu('s_bitcmp1_b32', s(3), 1, nodst=True)
    a.salu('s_cselect_b32', s(59), -1, 0); a.salu('s_cselect_b32', s(so), 512, 0)
    a.valu('v_and_b32', v(t+3), 56, v(0)); a.valu('v_add_u32', v(t+3), s(58), v(t+3))
    a.valu('v_xor_b32', v(t+3), s(59), v(t+3)); a.valu('v_subrev_u32', v(t+3), s(59), v(t+3)); a.valu('v_and_b32', v(t+3), 2047, v(t+3))
    a.valu('v_mul_u32_u24', v(t+3), 1026, v(t+3))
    a.valu('v_and_b32', v(t), 7, v(0)); a.valu('v_lshl_add_u32', v(t), v(t), 6, v(t+3))
    a.bload(v(t+1), v(t), SRD_C, s(so)); a.bload(v(t+2), v(t+3), SRD_C, s(so), 512)

def p1():
    L, GW, FOr, FOi, NFr, NFi, Gr, Gi, TW, D = 12, 28, 52, 56, 60, 64, 68, 72, 76, 92
    AW, AR, VST = 132, 133, 138
    a.salu('s_lshl_b32', s(21), s(3), 9); a.salu('s_add_u32', s(21), s(21), s(20)); a.salu('s_lshl_b32', s(22), s(21), 11)
    a.valu('v_lshrrev_b32', v(3), 1, v(1)); a.valu('v_lshlrev_b32', v(3), 4, v(3)); a.valu('v_lshl_add_u32', v(3), v(2), 9, v(3))
    a.valu('v_and_b32', v(4), 1, v(1)); a.valu('v_lshl_add_u32', v(4), v(4), 19, v(3))
    srd(12, 2048)
    a.valu('v_mov_b32', v(189), 0); a.salu('s_or_b32', s(42), s(2), s(3)); a.waitcnt(lgkm=0); a.salu('s_cmp_eq_u32', s(42), 0)
    tok = a.skip_begin('s_cbranch_scc0', 'f_noep')
    a.salu('s_mov_b32', s(23), EPOCH); a.bload(v(188), v(189), SRD_WS, s(23), mods=LD); a.vm[-1].clear()
    a.skip_end(tok)
    for k in range(4): a.bload(v(L+4*k, 4), v(4), SRD_X, s(22), 128*k)
    for k in range(4):
        if 'nogw' not in OPT['ab']: a.bload(v(GW+4*k, 4), v(3), SRD_B, 0, 128*k)
    if int(OPT['tlb']):
        sh = int(OPT['tlb'])
        a.valu('v_and_b32', v(195), 63, v(0)); a.valu('v_lshlrev_b32', v(195), sh, v(195))
        n = -(-WSEND >> (sh+6))
        a.salu('s_mov_b32', s(23), 0)
        for k in range(n):
            a.bload(v(200+k), v(195), SRD_WS, s(23))
            if k < n-1: a.salu('s_add_u32', s(23), s(23), 64 << sh)
        for b, sz in ((36, 0x400000), (32, 2048*1026), (34, 2048*1026)):
            a.salu('s_mov_b32', s(52), s(b)); a.salu('s_mov_b32', s(53), s(b+1)); srd(52, sz)
            a.bload(v(196+(b-32)//2), v(195), SRD_C, 0)
    stamp('ld')
    sb()
    a.valu('v_cvt_f32_u32', v(5), v(1)); a.valu('v_cvt_f32_u32', v(6), v(2))
    a.valu('v_mul_f32', v(7), 0.0625, v(5)); a.valu('v_mul_f32', v(8), v(5), v(6)); a.valu('v_mul_f32', v(8), 0.25, v(8))
    cmat(F16r, F16i, 8, 7, D)
    a.valu('v_fma_f32', v(9), v(7), 0.5, v(8))
    cmat(FOr, FOi, 9, 7, D+16); negmat(NFr, FOr)
    a.valu('v_mul_f32', v(9), 0.0625, v(8)); a.valu('v_mul_f32', v(7), 1.0/512, v(5))
    trig(TW, TW+1, 8, 9, 7, 2)
    a.valu('v_and_b32', v(7), 7, v(1)); a.valu('v_cvt_f32_u32', v(7), v(7)); a.valu('v_mul_f32', v(7), 0.125, v(7))
    a.valu('v_and_b32', v(8), 1, v(2)); a.valu('v_cvt_f32_u32', v(8), v(8)); a.valu('v_mul_f32', v(8), 4.0, v(8)); a.valu('v_mul_f32', v(8), v(8), v(7))
    a.valu('v_lshrrev_b32', v(9), 3, v(1)); a.valu('v_lshrrev_b32', v(11), 1, v(2))
    a.cmp('v_cmp_eq_u32', 'vcc', v(9), v(11))
    a.valu('v_lshlrev_b32', v(11), 31, v(11))
    a.valu('v_cndmask_b32', v(D+32), 0, 1.0, 'vcc'); a.valu('v_xor_b32', v(D+33), v(D+32), v(11))
    cmat(Gr, Gi, 8, 7, D, lo=D+32, hi=D+33)
    a.salu('s_lshr_b32', s(23), s(3), 1); a.salu('s_and_b32', s(24), s(3), 1); a.salu('s_lshl_b32', s(24), s(24), 3)
    a.valu('v_bfe_u32', v(7), v(1), 2, 1); a.valu('v_xor_b32', v(8), s(23), v(7)); a.valu('v_lshlrev_b32', v(8), 4, v(8))
    a.valu('v_lshl_add_u32', v(8), v(1), 5, v(8)); a.valu('v_lshl_add_u32', v(8), v(2), 11, v(8)); a.valu('v_add_u32', v(AW), s(24), v(8))
    a.valu('v_lshrrev_b32', v(11), 1, v(2)); a.valu('v_sub_u32', v(8), 0, v(11))
    a.valu('v_xor_b32', v(9), v(1), v(8)); a.valu('v_add_u32', v(9), v(9), v(11))
    a.valu('v_bfe_u32', v(7), v(9), 2, 1); a.valu('v_and_b32', v(D), 1, v(2)); a.valu('v_xor_b32', v(7), v(7), v(D))
    a.valu('v_lshlrev_b32', v(7), 4, v(7)); a.valu('v_lshl_add_u32', v(9), v(9), 5, v(7))
    a.valu('v_xor_b32', v(7), 512, v(8)); a.valu('v_add_u32', v(7), v(7), v(11))
    a.salu('s_lshl_b32', s(25), s(3), 2)
    a.valu('v_lshl_add_u32', v(AR+4), v(7), 4, v(9)); a.valu('v_and_b32', v(AR+4), 0x3fff, v(AR+4))
    a.valu('v_mul_lo_u32', v(D), v(7), s(25)); a.valu('v_add_u32', v(9), v(9), v(D))
    for nn in range(4):
        a.valu('v_and_b32', v(AR+nn), 0x3fff, v(9))
        if nn < 3: a.valu('v_add_u32', v(9), v(9), v(7))
    a.valu('v_and_b32', v(7), 7, v(1)); a.valu('v_lshlrev_b32', v(VST+1), 2, v(7)); a.valu('v_lshl_add_u32', v(7), v(7), 5, v(11))
    a.valu('v_mul_u32_u24', v(7), IS, v(7)); a.valu('v_lshrrev_b32', v(8), 3, v(1)); a.valu('v_lshl_add_u32', v(7), v(8), 5, v(7))
    a.valu('v_and_b32', v(8), 1, v(2)); a.valu('v_lshl_add_u32', v(VST), v(8), 4, v(7))
    a.salu('s_lshl_b32', s(26), s(20), 6); a.salu('s_mul_i32', s(27), s(3), 8*IS); a.salu('s_add_u32', s(27), s(27), s(26))
    for k in range(1, 4): a.salu('s_add_u32', s(27+k), s(26+k), 2*IS)
    a.salu('s_lshl_b32', s(26), s(20), 5); a.salu('s_add_u32', s(26), s(26), C1)
    if U2:
        a.valu('v_lshrrev_b32', v(7), 1, v(1)); a.valu('v_and_b32', v(8), 3, v(7)); a.valu('v_xor_b32', v(8), s(3), v(8)); a.valu('v_lshlrev_b32', v(8), 4, v(8))
        a.valu('v_lshl_add_u32', v(8), v(7), 7, v(8)); a.valu('v_lshl_add_u32', v(8), v(2), 12, v(8))
        a.valu('v_and_b32', v(7), 1, v(1)); a.valu('v_lshl_add_u32', v(AXW), v(7), 3, v(8))
        a.salu('s_lshl_b32', s(44), s(20), 6); a.salu('s_add_u32', s(44), s(44), UT)
        for k in range(1, 4): a.salu('s_add_u32', s(44+k), s(43+k), 64*IS)
    a.valu('v_bfe_u32', v(7), v(0), 3, 2); a.valu('v_xor_b32', v(7), v(7), v(0)); a.valu('v_lshlrev_b32', v(AR2), 4, v(7))
    a.valu('v_lshrrev_b32', v(7), 2, v(0)); a.valu('v_mul_u32_u24', v(7), IS, v(7))
    a.valu('v_and_b32', v(8), 3, v(0)); a.valu('v_lshl_add_u32', v(VST2), v(8), 4, v(7))
    se()
    a.salu('s_cmp_eq_u32', s(42), 0)
    tok = a.skip_begin('s_cbranch_scc0', 'f_notag')
    vm0 = list(a.vm); a.waitcnt(vm=8); a.vm = vm0
    a.valu('v_add_u32', v(188), 1, v(188)); a.valu('v_max_u32', v(188), 1, v(188)); a.salu('s_mov_b32', s(23), EPOCH)
    a.salu('s_mov_b64', 'exec', 1)
    a.bstore(v(188), v(189), SRD_DBG, 0, mods=ST); a.bstore(v(188), v(189), SRD_WS, s(23), mods=ST)
    a.salu('s_mov_b64', 'exec', -1)
    a.skip_end(tok)
    if OPT['wpf'] == 'early': wprefetch()
    stamp('setup')
    prio(2)
    T = 140
    sb()
    if U2:
        for k in range(4):
            for hh in range(2): a.dsw('ds_write_b64', v(AXW), v(L+4*k+2*hh, 2), mods=f'offset:{XB+1024*k+64*hh}')
    transpose4(L)
    for r in range(4):
        a.mfma(v(D+8*r, 4), v(L+4*r, 4), v(F16r, 4), 0); a.mfma(v(D+8*r+4, 4), v(L+4*r, 4), v(F16i, 4), 0)
    OP = 172
    for r in range(4):
        for hb in range(2):
            t = T + 4*(2*r+hb)
            tw_bcast(t, t+2, D+8*r+2*hb, D+8*r+4+2*hb, TW+2*(4*hb+r))
            for rb in range(2): a.cvt(v(OP+8*rb+4*(r & 1)+2*hb+(r >> 1)), v(t+rb), v(t+2+rb))
    MS = [(F16r, FOr, NFr), (F16i, FOi, NFi)]
    for rb in range(2):
        for c, (f0, f1, fn) in enumerate(MS):
            d = D+16*rb+8*c
            a.mfma(v(d, 4), v(f0, 4), v(OP+8*rb, 4), 0)
            a.mfma(v(d+4, 4), v(fn, 4), v(OP+8*rb+4, 4), v(d, 4)); a.mfma(v(d, 4), v(f1, 4), v(OP+8*rb+4, 4), v(d, 4))
    for t in (1, 0):
        for r in range(4):
            p = T + 2*(4*t+r)
            for rb in range(2): a.cvt(v(p+rb), v(D+16*rb+4*t+r), v(D+16*rb+8+4*t+r))
            a.dsw('ds_write_b64', v(AW), v(p, 2), mods=f'offset:{512*r+8192*t}')
    for k in range(4):
        for r in range(4): a.dot2(v(5+r), v(L+4*r+k), v(GW+4*k+r), 0 if k == 0 else v(5+r))
    se()
    a.waitcnt(lgkm=0); stamp('x'); a.barrier()
    a.salu('s_cmp_eq_u32', s(3), 3)
    tok = a.skip_begin('s_cbranch_scc0', 'f_no16')
    a.dsr('ds_read_b128', v(T, 4), v(AR+4))
    a.mfma(v(D+32, 4), v(T, 4), v(Gr, 4), 0); a.mfma(v(D+36, 4), v(T, 4), v(Gi, 4), 0)
    a.cvt(v(T), v(D+32), v(D+36))
    a.salu('s_mov_b64', 'exec', 0xff00); a.bstore(v(T), v(VST+1), SRD_WS, s(26), mods=ST); a.salu('s_mov_b64', 'exec', -1)
    a.skip_end(tok)
    sb()
    for nn in range(4): a.dsr('ds_read_b128', v(L+4*nn, 4), v(AR+nn))
    if U2:
        for n in range(4): a.dsr('ds_read_b128', v(OP+4*n, 4), v(AR2), mods=f'offset:{XB+4096*n}')
        if OPT['utfirst']:
            for n in range(4): a.bstore(v(OP+4*n, 4), v(VST2), SRD_WS, s(44+n), mods=ST)
    for nn in range(4):
        a.mfma(v(D+8*nn, 4), v(L+4*nn, 4), v(Gr, 4), 0); a.mfma(v(D+8*nn+4, 4), v(L+4*nn, 4), v(Gi, 4), 0)
    for nn in range(4):
        for r in range(4): a.cvt(v(T+4+4*nn+r), v(D+8*nn+r), v(D+8*nn+4+r))
        a.bstore(v(T+4+4*nn, 4), v(VST), SRD_WS, s(27+nn), mods=ST)
    if U2 and not OPT['utfirst']:
        for n in range(4): a.bstore(v(OP+4*n, 4), v(VST2), SRD_WS, s(44+n), mods=ST)
    a.valu('v_add_f32', v(5), v(5), v(6)); a.valu('v_add_f32', v(7), v(7), v(8)); a.valu('v_add_f32', v(5), v(5), v(7))
    a.valu('v_add_f32_dpp', v(5), v(5), v(5), mods='quad_perm:[2,3,0,1] row_mask:0xf bank_mask:0xf')
    a.valu('v_add_f32_dpp', v(5), v(5), v(5), mods='row_ror:4 row_mask:0xf bank_mask:0xf')
    a.valu('v_add_f32_dpp', v(5), v(5), v(5), mods='row_ror:8 row_mask:0xf bank_mask:0xf')
    se()
    prio(0)
    stamp('p1')

X, F1r, F1i, F4r, F4i, T1c, T1s, T2c, T2s, D2, AL, TMP2, CS = 12, 32, 36, 52, 56, 60, 64, 68, 72, 76, 116, 164, 196
def p2():
    WB = 16384
    tag_load(9, 10)
    a.salu('s_bitcmp1_b32', s(3), 0, nodst=True)
    a.salu('s_cselect_b32', s(12), s(34), s(32)); a.salu('s_cselect_b32', s(13), s(35), s(33)); srd(12, 2048*1026)
    a.salu('s_lshl_b32', s(25), s(41), 4); a.salu('s_sub_u32', s(26), 1010, s(25))
    a.salu('s_bitcmp1_b32', s(3), 1, nodst=True)
    a.salu('s_cselect_b32', s(25), s(26), s(25)); a.salu('s_cselect_b32', s(26), -1, 0); a.salu('s_cselect_b32', s(27), 1, 0)
    a.salu('s_cselect_b32', s(28), -1, 1); a.salu('s_lshl_b32', s(28), s(28), 9)
    a.valu('v_and_b32', v(14), 63, v(0)); a.valu('v_lshl_add_u32', v(14), v(14), 3, s(40))
    a.valu('v_xor_b32', v(14), s(26), v(14)); a.valu('v_add_u32', v(14), s(27), v(14))
    a.salu('s_lshl_b32', s(44), s(3), 12); a.salu('s_mov_b32', s(30), 1026); a.salu('s_mov_b32', s(45), s(25)); a.salu('s_mov_b32', s(46), s(28))
    if OPT['wpf'] == 'late': wprefetch()
    def wdma(n):
        a.valu('v_and_b32', v(15), 2047, v(14)); a.valu('v_mul_u32_u24', v(15), 1026, v(15))
        a.salu('s_add_u32', 'm0', s(44), WB+1024*n)
        if n < 3: a.valu('v_add_u32', v(14), s(46), v(14))
        if 'now' not in OPT['ab']: a.bdma(v(15), SRD_B, s(45))
    ng = int(OPT['gpos'][2:]) if OPT['gpos'].startswith('st') else 0
    for n in range(ng): wdma(n)
    publish(FL1, 2, 9, 10, ng + (2 if OPT['wpf'] == 'late' else 0), True)
    if ng:
        for n in range(ng, 4): wdma(n)
    if OPT['gpos'] == 'fl1':
        for n in range(4): wdma(n)
    stamp('fl1')
    a.salu('s_xor_b32', s(43), s(41), JX); a.salu('s_or_b32', s(43), s(43), s(3)); a.salu('s_cmp_eq_u32', s(43), 0)
    tok = a.skip_begin('s_cbranch_scc0', 'f_now256')
    a.salu('s_mov_b32', s(52), s(34)); a.salu('s_mov_b32', s(53), s(35)); srd(52, 2048*1026)
    a.valu('v_lshlrev_b32', v(6), 3, v(1)); a.valu('v_lshl_add_u32', v(6), v(2), 9, v(6)); a.valu('v_add_u32', v(6), s(40), v(6))
    a.valu('v_mul_u32_u24', v(6), s(30), v(6))
    for k in range(8): a.valu('v_mov_b32', v(W256+k), 0)
    a.salu('s_mov_b32', s(31), 0)
    for r in range(4):
        a.bload(v(W256+r), v(6), SRD_B, s(31), 512, op='buffer_load_short_d16_hi'); a.bload(v(W256+4+r), v(6), SRD_C, s(31), 512, op='buffer_load_short_d16_hi')
        if r < 3: a.salu('s_add_u32', s(31), s(31), 128*1026)
    for x in a.vm[-8:]: x.clear()
    a.skip_end(tok)
    sb()
    a.valu('v_mov_b32', v(6), v(5)); a.swap(v(5), v(6), 'v_permlane16_swap_b32'); a.valu('v_add_f32', v(5), v(5), v(6))
    a.valu('v_mov_b32', v(6), v(5)); a.swap(v(5), v(6), 'v_permlane32_swap_b32'); a.valu('v_add_f32', v(5), v(5), v(6))
    a.cvt(v(5), v(5), v(5)); a.valu('v_lshlrev_b32', v(5), 16, v(5)); a.valu('v_mul_f32', v(5), -LOG2E, v(5))
    a.valu('v_exp_f32', v(5), v(5)); a.valu('v_add_f32', v(5), 1.0, v(5)); a.valu('v_rcp_f32', v(5), v(5))
    a.cvt(v(5), v(5), v(5)); a.valu('v_lshlrev_b32', v(GATE), 16, v(5))
    a.valu('v_cvt_f32_u32', v(5), v(1)); a.valu('v_cvt_f32_u32', v(6), v(2)); a.valu('v_cvt_f32_u32', v(9), s(40))
    a.valu('v_mul_f32', v(7), 0.0625, v(5)); a.valu('v_mul_f32', v(8), v(5), v(6)); a.valu('v_mul_f32', v(8), 0.25, v(8))
    a.valu('v_mul_f32', v(10), v(9), v(5)); a.valu('v_mul_f32', v(10), 1.0/128, v(10)); a.valu('v_add_f32', v(10), v(10), v(8))
    cmat(F4r, F4i, 10, 7, D2)
    a.valu('v_mul_f32', v(10), 0.0625, v(10)); a.valu('v_mul_f32', v(7), 0.0625, v(7))
    trig(T2c, T2s, 4, 10, 7)
    a.valu('v_mul_f32', v(7), 8.0, v(5)); a.valu('v_add_f32', v(7), v(7), v(9)); a.valu('v_mul_f32', v(7), 1.0/128, v(7))
    a.valu('v_mul_f32', v(8), v(7), v(6)); a.valu('v_mul_f32', v(8), 4.0, v(8))
    cmat(F1r, F1i, 8, 7, D2+16)
    a.valu('v_mul_f32', v(8), 0.0625, v(8)); a.valu('v_mul_f32', v(7), 0.0625, v(7))
    trig(T1c, T1s, 4, 8, 7)
    a.salu('s_lshl_b32', s(30), s(41), 3); a.salu('s_lshl_b32', s(31), s(3), 1); a.salu('s_add_u32', s(30), s(30), s(31))
    a.valu('v_cvt_f32_u32', v(7), s(30)); a.valu('v_mul_f32', v(7), 1.0/1024, v(7))
    for c in range(2):
        if c: a.valu('v_add_f32', v(7), 1.0/1024, v(7))
        a.valu('v_sin_f32', v(CS+2*c), v(7)); a.valu('v_cos_f32', v(CS+2*c+1), v(7))
        a.valu('v_fma_f32', v(CS+2*c), v(CS+2*c), -0.5, 0.5); a.valu('v_mul_f32', v(CS+2*c+1), 0.5, v(CS+2*c+1))
    AW1, AW2 = 12, 13
    a.valu('v_lshlrev_b32', v(7), 4, v(1)); a.valu('v_lshl_add_u32', v(7), v(2), 10, v(7))
    a.salu('s_lshl_b32', s(31), s(3), 2); a.salu('s_add_u32', s(30), s(31), WB); a.valu('v_add_u32', v(AW1), s(30), v(7))
    a.salu('s_sub_u32', s(31), WB+12+8192, s(31)); a.valu('v_add_u32', v(AW2), s(31), v(7))
    a.valu('v_lshlrev_b32', v(3), 6, v(1)); a.valu('v_lshl_add_u32', v(3), v(2), 12, v(3))
    a.salu('s_lshr_b32', s(30), s(3), 1); a.salu('s_and_b32', s(31), s(3), 1); a.salu('s_lshl_b32', s(31), s(31), 3)
    a.valu('v_add_u32', v(3), s(31), v(3))
    a.valu('v_lshrrev_b32', v(7), 2, v(1)); a.valu('v_xor_b32', v(7), s(30), v(7)); a.valu('v_lshl_add_u32', v(AZ), v(7), 4, v(3)); a.valu('v_xor_b32', v(AZ+1), 32, v(AZ))
    a.valu('v_bfe_u32', v(7), v(1), 1, 2); a.valu('v_xor_b32', v(7), s(30), v(7)); a.valu('v_lshl_add_u32', v(AO), v(7), 4, v(3)); a.valu('v_xor_b32', v(AO+1), 32, v(AO))
    a.valu('v_and_b32', v(4), 63, v(0)); a.valu('v_xor_b32', v(VC+1), v(4), v(2)); a.valu('v_lshlrev_b32', v(VC+1), 4, v(VC+1))
    a.valu('v_lshlrev_b32', v(4), FSL, v(4))
    a.valu('v_lshlrev_b32', v(VC), 2, v(1)); a.valu('v_lshl_add_u32', v(VC), v(2), 8, v(VC))
    a.salu('s_mul_i32', s(24), s(20), IS); a.salu('s_lshl_b32', s(25), s(3), 12); a.salu('s_add_u32', s(24), s(24), s(25))
    a.salu('s_lshl_b32', s(26), s(20), 6); a.salu('s_add_u32', s(26), s(26), Z2)
    for k in range(1, 4): a.salu('s_add_u32', s(26+k), s(25+k), 64*IS)
    se()
    if OPT['gpos'] == 'set2':
        stamp('set2')
        if OPT['wdec']:
            a.salu('s_cmp_eq_u32', s(3), 0); tok = a.skip_begin('s_cbranch_scc1', 'f_nogather')
            for n in range(4): wdma(n)
            a.salu('s_mov_b32', s(52), s(32)); a.salu('s_mov_b32', s(53), s(33)); srd(52, 2048*1026)
            a.salu('s_lshl_b32', s(47), s(41), 4); a.salu('s_sub_u32', s(58), s(3), 1)
            a.valu('v_and_b32', v(14), 63, v(0)); a.valu('v_lshl_add_u32', v(14), v(14), 3, s(40))
            L_ = lab('g0'); a.label(L_)
            a.salu('s_lshl_b32', s(59), s(58), 9); a.valu('v_add_u32', v(15), s(59), v(14)); a.valu('v_mul_u32_u24', v(15), 1026, v(15))
            a.salu('s_lshl_b32', s(59), s(58), 10); a.salu('s_add_u32', 'm0', s(59), WB)
            a.salu('s_add_u32', s(58), s(58), 1)
            a.bdma(v(15), SRD_C, s(47))
            a.salu('s_cmp_eq_u32', s(58), 3); a.branch('s_cbranch_scc1', L_)
            a.skip_end(tok)
        else:
            for n in range(4): wdma(n)
    if not OPT['wdec']:
        a.waitcnt(vm=0); a.barrier()
        stamp('W')
    W = TMP2+16
    def coef():
        sb()
        for arr in range(4):
            ad = v(AW1) if arr < 2 else v(AW2); o = 16*(arr & 1)
            for h in range(2): a.dsr('ds_read2st64_b32', v(W+4*arr+2*h, 2), ad, mods=f'offset0:{o+2*h} offset1:{o+2*h+1}')
        for c in range(2):
            for h in range(2):
                b = AL+12*(2*c+h); K = CS+2*c
                ar, ai, dr, di, br, bi = b, b+2, b+4, b+6, b+8, b+10
                for arr, dst in enumerate((dr, di, ar, ai)):
                    hi = (c == 1) if arr < 2 else (c == 0)
                    for e in range(2):
                        if hi: a.valu('v_and_b32', v(dst+e), 0xffff0000, v(W+4*arr+2*h+e))
                        else: a.valu('v_lshlrev_b32', v(dst+e), 16, v(W+4*arr+2*h+e))
                if OPT['p2s']:
                    for e in range(2):
                        a.valu('v_sub_f32', v(bi+e), v(dr+e), v(ar+e)); a.valu('v_add_f32', v(br+e), v(di+e), v(ai+e))
                        a.valu('v_fmac_f32', v(ar+e), v(bi+e), v(K)); a.valu('v_fma_f32', v(ai+e), v(br+e), v(K), '-'+v(ai+e))
                        sfma(dr+e, bi+e, K, True); sfma(di+e, br+e, K, True)
                        a.valu('v_mul_f32', v(br+e), '-'+v(br+e), v(K+1)); smul(bi+e, bi+e, K+1)
                    continue
                pk('v_pk_add_f32', bi, dr, ar, neglo=[0,1], neghi=[0,1]); pk('v_pk_add_f32', br, di, ai)
                B = dict(sel=[0,0,0], selhi=[1,0,1])
                pk('v_pk_fma_f32', ar, bi, K, ar, **B); pk('v_pk_fma_f32', ai, br, K, ai, **B, neglo=[0,0,1], neghi=[0,0,1])
                pk('v_pk_fma_f32', dr, bi, K, dr, **B, **N0); pk('v_pk_fma_f32', di, br, K, di, **B, **N0)
                pk('v_pk_mul_f32', br, br, K, sel=[0,1], selhi=[1,1], neglo=[1,0], neghi=[1,0]); pk('v_pk_mul_f32', bi, bi, K, sel=[0,1], selhi=[1,1])
        se()
    if not OPT['wdec']: coef()
    if not OPT['wdec']: stamp('coef')
    poll(FL1, 4, 4, TMP2)
    prio(2)
    stamp('sync1')
    a.salu('s_mov_b32', 'm0', s(25))
    for n in range(4): a.bdma(v(VC+1), SRD_WS, s(24), 1024*n, mods=LD)
    if OPT['wdec']:
        a.waitcnt(vm=4); a.barrier(); stamp('W'); coef(); stamp('coef')
    a.salu('s_cmp_eq_u32', s(43), 0); a.branch('s_cbranch_scc1', 'f_p2x')
    st0 = (a.pos, list(a.h), list(a.vm), list(a.lg)); nst = len(STN)
    p2_body(False)
    a.branch('s_branch', 'f_p2done')
    a.label('f_p2x'); a.pos, a.h, a.vm, a.lg = st0; del STN[nst:]
    p2_body(True)
    a.label('f_p2done')
    prio(0)
    stamp('p2')
    publish(FL2, 2, 9, 10, 0, False)
    stamp('fl2')

def p2_body(extra):
    WB = 16384; nt = 5 if extra else 4; D = D2
    if extra:
        a.salu('s_lshl_b32', s(30), s(40), 2); a.salu('s_add_u32', s(30), s(30), C1); a.valu('v_lshlrev_b32', v(6), 3, v(VC))
        for k in range(4): a.bload(v(X+16+k), v(6), SRD_WS, s(30), 512*k, mods=LD)
        a.salu('s_lshl_b32', s(30), s(40), 10); a.salu('s_add_u32', s(30), s(30), C2)
    a.waitcnt(vm=0); a.barrier()
    stamp('z1')
    sb()
    for uv in range(2):
        for (dst, sl) in ((0, 0), (4, 1), (2, 2), (6, 3)):
            a.dsr('ds_read_b64', v(X+8*uv+dst, 2), v(AZ+uv), mods=f'offset:{1024*sl}')
        a.swap(v(X+8*uv+1), v(X+8*uv+4)); a.swap(v(X+8*uv+3), v(X+8*uv+6))
    def stage(dataA, Mr, Mi):
        for t in range(nt):
            for c, M in enumerate((Mr, Mi)):
                if dataA: a.mfma(v(D+8*t+4*c, 4), v(X+4*t, 4), v(M, 4), 0)
                else: a.mfma(v(D+8*t+4*c, 4), v(M, 4), v(X+4*t, 4), 0)
    def twid(Tc, Ts):
        for t in range(nt):
            for h in range(2):
                tt = TMP2+4*((2*t+h) % 8)
                re_, im_ = D+8*t+2*h, D+8*t+4+2*h
                op2('mul', tt, re_, Tc+2*h); op2('mul', tt+2, im_, Tc+2*h); op2('fma', tt, im_, Ts+2*h); op2('fma', tt+2, re_, Ts+2*h, True)
                for e in range(2): a.cvt(v(X+4*t+2*h+e), v(tt+e), v(tt+2+e))
    stage(True, F1r, F1i); twid(T1c, T1s); stage(False, F16r, F16i)
    for c in range(2):
        for h in range(2):
            b = AL+12*(2*c+h); ar, ai, dr, di, br, bi = b, b+2, b+4, b+6, b+8, b+10
            Ur, Ui, Vr, Vi = D+8*c+2*h, D+8*c+4+2*h, D+16+8*c+2*h, D+16+8*c+4+2*h
            t = TMP2+8*(2*c+h); ur, ui, vr, vi = t, t+2, t+4, t+6
            op2('mul', ur, ar, Ur); op2('mul', ui, ar, Ui); op2('mul', vr, dr, Vr); op2('mul', vi, dr, Vi)
            op2('fma', ur, ai, Ui, True); op2('fma', ui, ai, Ur); op2('fma', vr, di, Vi, True); op2('fma', vi, di, Vr)
            op2('fma', ur, br, Vr); op2('fma', ui, br, Vi); op2('fma', vr, br, Ur, True); op2('fma', vi, br, Ui, True)
            op2('fma', ur, bi, Vi, True); op2('fma', ui, bi, Vr); op2('fma', vr, bi, Ui); op2('fma', vi, bi, Ur, True)
            for e in range(2):
                a.cvt(v(X+4*c+2*h+e), v(ur+e), '-'+v(ui+e)); a.cvt(v(X+8+4*c+2*h+e), v(vr+e), '-'+v(vi+e))
    if extra:
        for h in range(2):
            Vr, Vi, wr, wi, t = D+32+2*h, D+36+2*h, W256+2*h, W256+4+2*h, 216+4*h
            op2('mul', t, wr, Vr); op2('mul', t+2, wr, Vi); op2('fma', t, wi, Vi, True); op2('fma', t+2, wi, Vr)
            for e in range(2): a.cvt(v(X+16+2*h+e), v(t+e), '-'+v(t+2+e))
    stage(True, F16r, F16i); twid(T2c, T2s); stage(False, F4r, F4i)
    for uv in range(2):
        for r in range(4):
            p = X+8*uv+2*r
            for c in range(2): a.cvt(v(p+c), v(D+16*uv+8*c+r), v(D+16*uv+8*c+4+r))
            a.dsw('ds_write_b64', v(AO+uv), v(p, 2), mods=f'offset:{WB+1024*r}')
    if extra:
        for r in range(4):
            a.cvt(v(X+16+r), v(D+32+r), v(D+36+r)); a.bstore(v(X+16+r), v(VC), SRD_WS, s(30), 64*r, mods=ST)
    se()
    a.waitcnt(lgkm=0); stamp('p2c'); a.barrier(); stamp('p2b')
    for n in range(4): a.dsr('ds_read_b128', v(D+4*n, 4), v(AR2), mods=f'offset:{WB+4096*n}')
    for n in range(4): a.bstore(v(D+4*n, 4), v(VST2), SRD_WS, s(26+n), mods=ST)

def p3():
    L, YV, EX, Gr, Gi, F0r, F0i, F1r, F1i, NFr, NFi, Tc, Ts, D, TMP = 12, 28, 52, 56, 60, 64, 68, 72, 76, 80, 84, 88, 96, 104, 136
    AP, AM, AR, OM, MK, VZ, VY, VE = 168, 170, 174, 176, 178, 180, 181, 182
    sb()
    a.salu('s_mov_b32', s(8), s(36)); a.salu('s_mov_b32', s(9), s(37))
    a.salu('s_mul_i32', s(22), s(20), IS); a.salu('s_lshl_b32', s(23), s(3), 9); a.salu('s_add_u32', s(23), s(23), s(22)); a.salu('s_add_u32', s(23), s(23), Z2)
    a.salu('s_add_u32', s(24), s(23), 4096)
    a.salu('s_lshl_b32', s(25), s(20), 2); a.salu('s_add_u32', s(25), s(25), C2)
    a.salu('s_lshl_b32', s(26), s(3), 12); a.salu('s_add_u32', s(27), s(26), s(22)); a.salu('s_add_u32', s(27), s(27), YY); a.salu('s_add_u32', s(26), s(26), 16384)
    a.valu('v_and_b32', v(3), 1, v(2)); a.valu('v_lshlrev_b32', v(VE), 12, v(3)); a.valu('v_lshlrev_b32', v(3), 13, v(3))
    a.valu('v_lshrrev_b32', v(9), 1, v(2)); a.valu('v_lshl_add_u32', v(3), v(9), 5, v(3))
    a.valu('v_lshrrev_b32', v(5), 1, v(1)); a.valu('v_lshl_add_u32', v(3), v(5), 6, v(3))
    a.valu('v_and_b32', v(6), 1, v(1)); a.valu('v_lshl_add_u32', v(VZ), v(6), 4, v(3))
    a.valu('v_lshlrev_b32', v(6), 6, v(1)); a.valu('v_lshl_add_u32', v(6), v(2), 12, v(6))
    a.valu('v_lshrrev_b32', v(VY), 2, v(1)); a.valu('v_xor_b32', v(VY), s(3), v(VY)); a.valu('v_lshl_add_u32', v(VY), v(VY), 4, v(6))
    a.valu('v_cvt_f32_u32', v(5), v(1)); a.valu('v_cvt_f32_u32', v(6), v(2))
    a.valu('v_lshrrev_b32', v(7), 2, v(1)); a.valu('v_and_b32', v(8), 1, v(1)); a.valu('v_lshl_add_u32', v(7), v(7), 1, v(8))
    a.valu('v_cvt_f32_u32', v(7), v(7)); a.valu('v_mul_f32', v(7), 0.125, v(7))
    a.valu('v_and_b32', v(8), 1, v(2)); a.valu('v_cvt_f32_u32', v(8), v(8)); a.valu('v_mul_f32', v(8), 4.0, v(8)); a.valu('v_mul_f32', v(8), v(8), v(7))
    a.valu('v_bfe_u32', v(10), v(1), 1, 1); a.cmp('v_cmp_eq_u32', 'vcc', v(10), v(9)); a.valu('v_lshlrev_b32', v(10), 31, v(10))
    a.valu('v_cndmask_b32', v(D+32), 0, 1.0, 'vcc'); a.valu('v_xor_b32', v(D+33), v(D+32), v(10))
    cmat(Gr, Gi, 8, 7, D, lo=D+32, imneg=D+33)
    a.valu('v_mul_f32', v(8), v(5), v(6)); a.valu('v_mul_f32', v(8), 0.0625, v(8)); a.valu('v_mul_f32', v(7), 0.25, v(5))
    cmat(F0r, F0i, 8, 7, D+16)
    a.valu('v_mul_f32', v(10), 1.0/32, v(6)); a.valu('v_add_f32', v(8), v(8), v(10)); a.valu('v_add_f32', v(7), 0.125, v(7))
    cmat(F1r, F1i, 8, 7, D); negmat(NFr, F1r)
    for t in range(2):
        a.valu('v_mul_f32', v(7), 1.0/256, v(5))
        if t: a.valu('v_add_f32', v(7), 1.0/512, v(7))
        a.valu('v_mul_f32', v(8), v(7), v(6)); a.valu('v_mul_f32', v(8), 4.0, v(8))
        trig(Tc+4*t, Ts+4*t, 4, 8, 7)
    a.valu('v_and_b32', v(7), 1, v(2)); a.valu('v_lshlrev_b32', v(7), 3, v(7)); a.valu('v_lshl_add_u32', v(7), v(9), 4, v(7))
    a.salu('s_lshl_b32', s(34), s(3), 4); a.valu('v_add_u32', v(8), s(34), v(1))
    def waddr(d, nreg):
        a.valu('v_bfe_u32', v(10), v(nreg), 2, 1); a.valu('v_lshlrev_b32', v(10), 4, v(10)); a.valu('v_xor_b32', v(10), v(10), v(7))
        a.valu('v_lshl_add_u32', v(d), v(nreg), 5, v(10)); a.valu('v_xor_b32', v(d+1), 16, v(d))
    waddr(AP, 8)
    a.valu('v_sub_u32', v(9), 127, v(8)); waddr(AM, 9)
    a.valu('v_add_u32', v(9), 1, v(9)); a.valu('v_and_b32', v(9), 127, v(9)); waddr(AM+2, 9)
    a.valu('v_and_b32', v(9), 3, v(1)); a.valu('v_lshlrev_b32', v(9), 12, v(9)); a.valu('v_lshrrev_b32', v(10), 2, v(1))
    a.valu('v_lshl_add_u32', v(9), v(10), 5, v(9)); a.valu('v_lshl_add_u32', v(9), v(2), 7, v(9))
    a.salu('s_lshr_b32', s(35), s(3), 1); a.valu('v_xor_b32', v(10), v(1), v(2)); a.valu('v_xor_b32', v(10), s(35), v(10)); a.valu('v_and_b32', v(10), 1, v(10))
    a.valu('v_lshl_add_u32', v(9), v(10), 4, v(9)); a.salu('s_and_b32', s(35), s(3), 1); a.salu('s_lshl_b32', s(35), s(35), 3); a.valu('v_add_u32', v(AR), s(35), v(9))
    a.cmp('v_cmp_eq_u32', 'vcc', 0, v(8)); a.valu('v_lshlrev_b32', v(AR+1), 3, v(2)); a.valu('v_cndmask_b32', v(MK), 0, 0.5, 'vcc')
    for rb in range(2): a.ins('rdlane', 'v_readlane_b32', [s(32+rb), v(GATE), rb], {f's{32+rb}'}, {f'v{GATE}'})
    for rb in range(2):
        a.valu('v_sub_f32', v(OM+rb), 1.0, s(32+rb)); a.cvt(v(OM+rb), v(OM+rb), v(OM+rb)); a.valu('v_lshlrev_b32', v(OM+rb), 16, v(OM+rb))
        a.valu('v_mul_f32', v(OM+rb), 2.0**-20, v(OM+rb))
    a.salu('s_lshr_b32', s(32), s(32), 16)
    a.salu('s_lshl_b32', s(38), s(21), 11); a.salu('s_add_u32', s(39), s(38), 256*2048)
    a.valu('v_lshlrev_b32', v(3), 3, v(1)); a.valu('v_lshl_add_u32', v(3), v(2), 9, v(3))
    se()
    stamp('set3')
    def ldY():
        a.salu('s_mov_b32', 'm0', s(26))
        for n in range(4): a.bdma(v(VC+1), SRD_WS, s(27), 1024*n, mods=LD)
    PAR = OPT['polls'] == 'par'
    if PAR: poll(FL2, 4, 4, TMP, FLY)
    else:
        if OPT['yfirst']:
            poll(FLY, 4, 4, TMP); stamp('syncY'); ldY()
        poll(FL2, 4, 4, TMP)
    prio(2)
    stamp('sync2')
    for k in range(4): a.bload(v(L+4*k, 4), v(VZ), SRD_WS, s(23+(k >> 1)), 2048*(k & 1), mods=LD)
    if PAR: ldY()
    a.salu('s_cmp_eq_u32', s(3), 3)
    tok = a.skip_begin('s_cbranch_scc0', 'f_no256')
    for k in range(4): a.bload(v(EX+k), v(VE), SRD_WS, s(25), 1024*k, mods=LD)
    a.mfma(v(TMP, 4), v(Gr, 4), v(EX, 4), 0); a.mfma(v(TMP+4, 4), v(Gi, 4), v(EX, 4), 0)
    a.salu('s_mov_b32', s(30), 0x00010001); a.salu('s_mov_b32', s(31), s(30))
    for e in range(2): a.cvt(v(TMP+8+e), v(TMP+2+e), v(TMP+6+e))
    a.salu('s_mov_b64', 'exec', s(30, 2))
    a.dsw('ds_write_b64', v(AR+1), v(TMP+8, 2), mods='offset:2048')
    a.salu('s_mov_b64', 'exec', -1)
    a.skip_end(tok)
    sb()
    transpose4(L)
    for r in range(4):
        a.mfma(v(D+8*r, 4), v(Gr, 4), v(L+4*r, 4), 0); a.mfma(v(D+8*r+4, 4), v(Gi, 4), v(L+4*r, 4), 0)
    for c in range(2):
        pk('v_pk_add_f32', TMP+12+2*c, D+4*c+2, D+4*c, neglo=[0,1], neghi=[0,1])
        pk('v_pk_fma_f32', D+4*c, TMP+12+2*c, MK, D+4*c, sel=[0,0,0], selhi=[1,0,1])
    for r in range(4):
        for sg in (1, 0):
            p = TMP+16+4*r+2*sg
            for e in range(2): a.cvt(v(p+e), v(D+8*r+2*sg+e), v(D+8*r+4+2*sg+e))
            if sg == 0: ad, off = AP+(r & 1), 4096*r
            elif r == 0: ad, off = AM+2, 0
            else: ad, off = AM+(r & 1), 4096*(4-r)
            a.dsw('ds_write_b64', v(ad), v(p, 2), mods=f'offset:{off}')
    se()
    a.waitcnt(lgkm=0); stamp('z2')
    if PAR: a.barrier()
    elif OPT['yfirst']: a.waitcnt(vm=0); a.barrier()
    else:
        poll(FLY, 4, 4, TMP); ldY()
    sb()
    for e in range(2):
        for (dst, sl) in ((0, 0), (4, 1), (2, 2), (6, 3)):
            a.dsr('ds_read_b64', v(L+8*e+dst, 2), v(AR), mods=f'offset:{512*sl+2048*e}')
        a.swap(v(L+8*e+1), v(L+8*e+4)); a.swap(v(L+8*e+3), v(L+8*e+6))
    OP = 184
    for rb in range(2):
        for t in range(2):
            for c in range(2):
                d = v(D+16*rb+8*t+4*c, 4)
                for e in range(2):
                    M = [[F0r, F0i], [F1r, F1i] if e == 0 else [NFr, NFi]][t][c]
                    a.mfma(d, v(L+8*e+4*rb, 4), v(M, 4), 0 if e == 0 else d)
    for rb in range(2):
        for t in range(2):
            for h in range(2):
                tt = TMP+4*(4*rb+2*t+h); b = D+16*rb+8*t
                tw_pairs(tt, tt+2, b+2*h, b+4+2*h, Tc+4*t+2*h, Ts+4*t+2*h)
                for e in range(2): a.cvt(v(OP+8*rb+4*t+2*h+e), v(tt+e), v(tt+2+e))
            for c, M in enumerate((F16r, F16i)): a.mfma(v(D+16*rb+8*t+4*c, 4), v(M, 4), v(OP+8*rb+4*t, 4), 0)
    if PAR or not OPT['yfirst']:
        se(); a.waitcnt(vm=0); a.barrier(); sb()
    for r in range(4): a.dsr('ds_read_b128', v(YV+4*r, 4), v(VY), mods=f'offset:{16384+1024*r}')
    for rb in range(2):
        for t in range(2):
            for c in range(2):
                for h in range(2):
                    b = D+16*rb+8*t+4*c+2*h
                    ng = dict(neglo=[1,0], neghi=[1,0]) if c else {}
                    pk('v_pk_mul_f32', b, b, OM, sel=[0,rb], selhi=[1,rb], **ng)
        for r in range(4):
            for ch in range(4):
                b = D+16*rb+4*ch+r; a.dot2(v(b), v(YV+4*r+ch), s(32+rb), v(b))
            p = L+8*rb+2*r
            for hh in range(2): a.cvt(v(p+hh), v(D+16*rb+8*hh+r), v(D+16*rb+8*hh+4+r))
            a.bstore(v(p, 2), v(3), SRD_X, s(38+rb), 128*r)
    se()
    stamp('p3')
    if OPT['stamp']: a.waitcnt(vm=0)

PITCH = 544; CR = 16*PITCH; WSZ = CR+7936; RO = CR; C1O = CR+2112; UO = CR+3840
BOX, MID, VB, VA16, VA32, VS2, VS3, VK = 196, 216, 220, 221, 222, 223, 224, 225
def roleA():
    XR, PO, PR = 12, 28, 44
    E1, E8, E256, XC, TT = 48, 52, 56, 60, 64
    a.sload(s(32, 8), s(0, 2), 8); a.sload(s(40, 4), s(0, 2), 40)
    a.salu('s_sub_u32', s(20), s(2), 256); a.salu('s_and_b32', s(24), s(20), 7); a.salu('s_lshr_b32', s(25), s(20), 3)
    a.salu('s_lshl_b32', s(19), s(24), 5); a.salu('s_add_u32', s(19), s(19), s(25))
    a.salu('s_lshl_b32', s(21), s(19), 2); a.salu('s_add_u32', s(21), s(21), s(3))
    a.salu('s_lshl_b32', s(22), s(21), 1); a.salu('s_and_b32', s(22), s(22), -4)
    a.valu('v_and_b32', v(3), 63, v(0)); a.valu('v_lshlrev_b32', v(4), 2, v(3))
    a.salu('s_lshl_b32', s(23), s(21), 8); a.valu('v_add_u32', v(4), s(23), v(4))
    a.salu('s_lshr_b32', s(16), s(3), 1); a.salu('s_and_b32', s(17), s(3), 1)
    a.salu('s_lshl_b32', s(26), s(25), 1); a.salu('s_add_u32', s(16), s(16), s(26))
    a.salu('s_lshl_b32', s(27), s(24), 1); a.salu('s_add_u32', s(17), s(17), s(27))
    a.salu('s_lshl_b32', s(26), s(16), 16); a.salu('s_lshl_b32', s(27), s(17), 7); a.salu('s_add_u32', s(26), s(26), s(27))
    a.valu('v_lshlrev_b32', v(5), 3, v(1)); a.valu('v_lshl_add_u32', v(5), v(2), 14, v(5))
    for k in range(4): a.gload(v(PR+k), v(4), s(32+2*k, 2))
    a.sload(s(44), s(40, 2), s(22)); a.sload(s(45), s(42, 2), s(22))
    XG = 226
    def xprefetch():
        a.salu('s_lshl_b32', s(26), s(25), 17); a.salu('s_lshl_b32', s(27), s(24), 8); a.salu('s_add_u32', s(26), s(26), s(27))
        a.valu('v_lshrrev_b32', v(XG+16), 2, v(0)); a.valu('v_and_b32', v(XG+17), 3, v(0)); a.valu('v_lshlrev_b32', v(XG+17), 6, v(XG+17))
        a.valu('v_lshl_add_u32', v(XG+16), v(XG+16), 11, v(XG+17))
        a.bload(v(XG+17), v(XG+16), SRD_X, s(26))
    if DG and OPT['xpf'] == 'early': xprefetch()
    if U2 and OPT['wpf'] == 'A0':
        a.waitcnt(lgkm=0); a.sload(s(32, 4), s(0, 2), 64); wprefetch(32, 24, 25, 244, 36)
    for e in range(8):
        if DG or U2: break
        if e and e % 2 == 0: a.salu('s_add_u32', s(26), s(26), 4096)
        if 'noax' in OPT['ab']: continue
        if 'cax' in OPT['ab']:
            if e == 0: a.salu('s_lshl_b32', s(27), s(20), 14); a.valu('v_lshlrev_b32', v(5), 3, v(0))
            if e and e % 2 == 0: a.salu('s_add_u32', s(27), s(27), 4096)
            a.bload(v(XR+2*e, 2), v(5), SRD_X, s(27), 2048*(e & 1)); continue
        a.bload(v(XR+2*e, 2), v(5), SRD_X, s(26), 2048*(e & 1))
    stamp('ld')
    sb()
    if DG:
        a.valu('v_lshlrev_b32', v(11), 14, v(0)); a.salu('s_lshl_b32', s(12), s(19), 3)
    elif U2:
        a.valu('v_and_b32', v(72), 7, v(3)); a.salu('s_lshl_b32', s(12), s(3), 3); a.valu('v_add_u32', v(72), s(12), v(72)); a.valu('v_lshrrev_b32', v(73), 3, v(3))
        a.valu('v_lshlrev_b32', v(11), 9, v(72)); a.valu('v_lshl_add_u32', v(11), v(73), 3, v(11))
        a.valu('v_lshlrev_b32', v(XG+16), 4, v(72)); a.valu('v_lshl_add_u32', v(XG+16), v(73), 9, v(XG+16))
        a.valu('v_lshlrev_b32', v(XG+17), FSL, v(3))
        a.salu('s_mul_i32', s(12), s(19), IS); a.salu('s_add_u32', s(12), s(12), UT)
    else:
        a.valu('v_mul_u32_u24', v(11), 4*US, v(1)); a.valu('v_lshl_add_u32', v(11), v(2), 4, v(11))
        a.salu('s_mul_i32', s(26), s(17), 64*US); a.salu('s_lshl_b32', s(27), s(16), 6); a.salu('s_add_u32', s(26), s(26), s(27)); a.salu('s_add_u32', s(12), s(26), UT)
    for k in range(1, 4): a.salu('s_add_u32', s(12+k), s(11+k), 4096 if DG else US)
    a.salu('s_mov_b32', s(46), 0x05040100); a.salu('s_mov_b32', s(47), 0x07060302)
    a.salu('s_mul_i32', s(28), s(3), WSZ)
    AWR, AAA, AAC, AB, AIM = 5, 6, 7, 8, 9
    a.valu('v_lshl_add_u32', v(AWR), v(3), 3, s(28)); a.valu('v_lshl_add_u32', v(72), v(2), 4, s(28))
    a.salu('s_mov_b32', s(29), PITCH)
    a.valu('v_mad_u32_u24', v(AB), v(1), s(29), v(72))
    a.valu('v_and_b32', v(AAC), 7, v(1)); a.valu('v_lshlrev_b32', v(73), 2, v(AAC))
    a.cmp('v_cmp_gt_u32', 'vcc', 8, v(1))
    a.valu('v_mov_b32', v(AAA), 0xCBAAA988); a.valu('v_mov_b32', v(AIM), 0x76543210)
    a.valu('v_cndmask_b32', v(AAA), v(AAA), v(AIM), 'vcc'); a.valu('v_bfe_u32', v(AAA), v(AAA), v(73), 4)
    a.valu('v_mad_u32_u24', v(AAA), v(AAA), s(29), v(72))
    a.valu('v_add_u32', v(AAC), 13, v(AAC)); a.valu('v_mad_u32_u24', v(AAC), v(AAC), s(29), v(72))
    a.valu('v_lshl_add_u32', v(AIM), v(3), 4, s(28))
    a.valu('v_lshlrev_b32', v(VB), 5, v(1)); a.valu('v_lshl_add_u32', v(VB), v(2), 4, v(VB)); a.salu('s_add_u32', s(30), s(28), UO-512); a.valu('v_add_u32', v(VB), s(30), v(VB))
    a.valu('v_lshlrev_b32', v(74), 3, v(2)); a.valu('v_sub_u32', v(74), v(74), v(1)); a.valu('v_cvt_f32_i32', v(75), v(74))
    a.valu('v_and_b32', v(VA32), 1, v(1)); a.cmp('v_cmp_eq_u32', 'vcc', 1, v(VA32))
    a.valu('v_mov_b32', v(VA16), C1O+1060-512); a.valu('v_mov_b32', v(VA32), RO+1062-512)
    a.valu('v_cndmask_b32', v(VA16), v(VA16), v(VA32), 'vcc'); a.valu('v_lshl_add_u32', v(VA16), v(74), 1, v(VA16))
    a.valu('v_add_u32', v(VA16), s(28), v(VA16)); a.valu('v_subrev_u32', v(VA32), 512, v(VA16))
    a.valu('v_lshlrev_b32', v(74), 2, v(2)); a.valu('v_sub_u32', v(74), v(1), v(74))
    a.salu('s_add_u32', s(30), s(28), RO+1152+96); a.valu('v_lshl_add_u32', v(VS2), v(74), 3, s(30))
    a.salu('s_add_u32', s(31), s(28), RO+1664+48); a.valu('v_lshl_add_u32', v(VS3), v(74), 2, s(31))
    a.salu('s_add_u32', s(18), s(28), RO+1152+93*4+2); a.valu('v_mov_b32', v(VK), s(18))
    T = 100
    for n_, (ctr, lst) in enumerate(((8.0, [(BOX+4, 3.0), (BOX+12, 4.0), (BOX+16, 5.0)]), (12.0, [(BOX, 2.0)]), (4.0, [(BOX+8, 2.0)]), (12.5, [(MID, 1.5)]))):
        for e in range(8): a.valu('v_add_f32', v(T+8*n_+e), float(e-ctr), v(75))
        for d, w1 in lst:
            if w1 in (2.0, 4.0): c_ = w1
            else: a.valu('v_mov_b32', v(76), w1); c_ = v(76)
            for e in range(8): a.valu('v_sub_f32', v(T+32+e), c_, '|'+v(T+8*n_+e)+'|', mods='clamp')
            for k in range(4): a.cvt(v(d+k), v(T+32+2*k), v(T+33+2*k))
    for k in range(4):
        a.valu('v_lshrrev_b32', v(MID+k), 13, v(MID+k)); a.valu('v_and_b32', v(MID+k), 0x10001, v(MID+k))
    se()
    stamp('setup')
    if DG:
        if OPT['xpf'] == 'late': xprefetch()
    elif U2:
        if OPT['wpf'] == 'A':
            a.waitcnt(lgkm=0); a.sload(s(32, 4), s(0, 2), 64); wprefetch(32, 24, 25, 244, 36)
    else:
        prio(3)
        for cc in range(4):
            for e in range(4): a.valu('v_perm_b32', v(PO+4*cc+e), v(XR+4*e+2+(cc >> 1)), v(XR+4*e+(cc >> 1)), s(46+(cc & 1)))
            if 'nout' not in OPT['ab']: a.bstore(v(PO+4*cc, 4), v(11), SRD_WS, s(12+cc), mods=ST)
        prio(0)
        tag_load(10, 11)
        if OPT['wpf'] == 'A':
            a.waitcnt(lgkm=0); a.sload(s(32, 4), s(0, 2), 64); wprefetch(32, 24, 25, 226, 36)
        stamp('uT')
    a.waitcnt(lgkm=0)
    sb()
    a.salu('s_and_b32', s(30), s(21), 1); a.salu('s_xor_b32', s(30), s(30), 1); a.salu('s_lshl_b32', s(30), s(30), 4)
    a.salu('s_lshl_b32', s(44), s(44), s(30)); a.salu('s_and_b32', s(44), s(44), 0xffff0000)
    a.salu('s_lshl_b32', s(45), s(45), s(30)); a.salu('s_and_b32', s(45), s(45), 0xffff0000)
    DT = 4
    a.valu('v_mov_b32', v(DT), LOG2E); a.valu('v_mul_f32', v(DT), s(44), v(DT)); a.valu('v_exp_f32', v(DT), v(DT))
    a.cvt(v(DT), v(DT), v(DT)); a.valu('v_lshlrev_b32', v(DT), 16, v(DT))
    AR_, AI_ = 68, 70
    for md in range(2):
        def unp(d, src):
            if md == 0: a.valu('v_lshlrev_b32', v(d), 16, v(src))
            else: a.valu('v_and_b32', v(d), 0xffff0000, v(src))
        unp(AR_+md, PR); unp(AI_+md, PR+1); unp(XC+2*md, PR+2); unp(XC+2*md+1, PR+3)
        a.valu('v_mul_f32', v(AR_+md), LOG2E, v(AR_+md)); a.valu('v_exp_f32', v(AR_+md), v(AR_+md))
        a.valu('v_mul_f32', v(AI_+md), v(AI_+md), v(DT)); a.valu('v_mul_f32', v(AI_+md), 1/(2*math.pi), v(AI_+md))
    a.cvt(v(TT), v(AR_), v(AR_+1))
    a.valu('v_add_f32', v(TT+2), v(DT), v(DT))
    a.valu('v_lshlrev_b32', v(AR_), 16, v(TT)); a.valu('v_and_b32', v(AR_+1), 0xffff0000, v(TT))
    for md in range(2):
        a.valu('v_mul_f32', v(AR_+md), v(AR_+md), v(DT)); a.valu('v_mul_f32', v(AR_+md), -LOG2E, v(AR_+md))
        pk('v_pk_mul_f32', XC+2*md, XC+2*md, TT+2, sel=[0,0], selhi=[1,0])
    for n_, (E, mul) in enumerate(((E1, 1.0), (E8, 8.0), (E256, 256.0))):
        for md in range(2):
            t = 100+4*(2*n_+md)
            if mul != 1.0:
                a.valu('v_mul_f32', v(t), mul, v(AR_+md)); a.valu('v_mul_f32', v(t+2), mul, v(AI_+md))
                a.valu('v_exp_f32', v(t), v(t)); a.valu('v_fract_f32', v(t+2), v(t+2))
            else:
                a.valu('v_exp_f32', v(t), v(AR_+md)); a.valu('v_fract_f32', v(t+2), v(AI_+md))
            a.valu('v_cos_f32', v(E+2*md), v(t+2)); a.valu('v_sin_f32', v(E+2*md+1), v(t+2))
            pk('v_pk_mul_f32', E+2*md, E+2*md, t, sel=[0,0], selhi=[1,0])
    pkc = [0]
    def putrow(row, src, negim=False):
        p = 12+2*(pkc[0] % 8); pkc[0] += 1
        for md in range(2): a.cvt(v(p+md), v(src+2*md), ('-' if negim else '')+v(src+2*md+1))
        a.dsw('ds_write_b64', v(AWR), v(p, 2), mods=f'offset:{row*PITCH}')
        e, rem = divmod(pkc[0]-int(OPT['g0']), int(OPT['gs']))
        if DG and rem == 0 and 0 <= e < 8:
            se()
            if e == 0: stamp('g0')
            a.bload(v(XG+2*e, 2), v(11), SRD_X, s(12+(e >> 1)), 2048*(e & 1)); sb()
    tc = [0]
    def cm(d, x, m):
        t = 28+4*(tc[0] % 4); tc[0] += 1
        for md in range(2): pk('v_pk_mul_f32', t+2*md, x+2*md, m+2*md, sel=[0,0], selhi=[1,0])
        for md in range(2): pk('v_pk_fma_f32', d+2*md, x+2*md, m+2*md, t+2*md, sel=[1,1,0], selhi=[0,1,1], neglo=[1,0,0])
    y2, y4, y6, ya, yb, yc, yd = [72+4*k for k in range(7)]
    a.valu('v_mov_b32', v(44), 0x3f80); a.valu('v_mov_b32', v(45), 0x3f80)
    a.dsw('ds_write_b64', v(AWR), v(44, 2))
    putrow(1, E1); putrow(8, E256)
    cm(y2, E1, E1); putrow(2, y2)
    cm(ya, y2, E1); putrow(3, ya)
    cm(y4, y2, y2); putrow(4, y4)
    cm(yd, y4, E1); putrow(5, yd)
    cm(y6, y4, y2); putrow(6, y6)
    cm(ya, y6, E1); putrow(7, ya)
    def pubU(pos):
        if OPT['flupos'] != pos or DG or U2: return
        se(); stamp('pre'); publish(FLU, 20, 10, 11, 2 if OPT['wpf'] == 'A' else 0, True); stamp('flu'); sb()
    pubU('B')
    OA = 100; OB = 164; DD = 76
    cm(yd, E256, y2); putrow(9, yd)
    cm(yb, E256, y4); putrow(10, yb)
    cm(ya, E256, y6); putrow(11, ya)
    cm(yc, E256, E8); putrow(12, yc)
    cm(yb, yb, E256); putrow(13, yb)
    cm(yc, yc, E256); putrow(14, yc)
    cm(yd, yb, E256); putrow(15, yd)
    cm(yc, yc, E256); putrow(16, yc)
    cm(ya, yb, yb); putrow(17, ya)
    for row in (18, 19, 20):
        cm(ya, ya, E256); putrow(row, ya)
    for ks in range(8): a.dsr('ds_read_b128', v(OA+4*ks, 4), v(AAA), mods=f'offset:{64*ks}')
    for ks in range(8): a.dsr('ds_read_b128', v(OA+32+4*ks, 4), v(AAC), mods=f'offset:{64*ks}')
    pubU('Y')
    for j in range(16):
        if j: cm(XC, XC, E8)
        putrow(j, XC, True)
    pubU('X')
    for k in range(4): a.valu('v_mov_b32', v(44+k), 0)
    for k in range(4):
        if k == 3: a.salu('s_mov_b32', 'exec_hi', 0xffff)
        a.dsw('ds_write_b128', v(AIM), v(44, 4), mods=f'offset:{CR+1024*k}')
    a.salu('s_mov_b64', 'exec', -1)
    for ks in range(8): a.dsr('ds_read_b128', v(OB+4*ks, 4), v(AB), mods=f'offset:{64*ks}')
    for j in range(16):
        cm(XC, XC, E8); putrow(j, XC, True)
        ks = j >> 1; t = j & 1
        a.mfma(v(DD+4*t, 4), v(OA+32*t+4*ks, 4), v(OB+4*ks, 4), 0 if ks == 0 else v(DD+4*t, 4))
    for ks in range(8): a.dsr('ds_read_b128', v(OB+4*ks, 4), v(AB), mods=f'offset:{64*ks}')
    a.valu('v_and_b32', v(4), 31, v(3)); a.valu('v_lshlrev_b32', v(4), FSL+3, v(4)); a.salu('s_lshl_b32', s(30), s(24), FSL); a.valu('v_add_u32', v(4), s(30), v(4))
    a.valu('v_lshlrev_b32', v(10), 4, v(3))
    a.salu('s_mul_i32', s(23), s(21), US); a.salu('s_add_u32', s(23), s(23), UT); a.salu('s_add_u32', s(31), s(28), UO)
    se()
    a.waitcnt(lgkm=0)
    stamp('rows')
    def getU():
        poll(FLU, 1, 4, 44)
        stamp('syncU')
        a.salu('s_add_u32', 'm0', s(28), UO)
        for k in range(4): a.bdma(v(10), SRD_WS, s(23), 1024*k, mods=LD)
    if not DG and not U2 and not OPT['tabfirst']: getU()
    AN, AS2 = 16, 17
    sb()
    a.valu('v_lshrrev_b32', v(18), 1, v(2)); a.valu('v_lshlrev_b32', v(18), 9, v(18)); a.valu('v_lshl_add_u32', v(18), v(1), 4, v(18))
    a.valu('v_and_b32', v(19), 1, v(2)); a.valu('v_lshl_add_u32', v(18), v(19), 3, v(18))
    a.salu('s_add_u32', s(30), s(28), RO+1088-256-2); a.valu('v_sub_u32', v(AN), s(30), v(18))
    a.salu('s_add_u32', s(31), s(28), RO+1152+120); a.valu('v_lshl_add_u32', v(AS2), v(1), 2, s(31))
    a.salu('s_add_u32', s(18), s(28), RO+1664+60); a.valu('v_lshl_add_u32', v(18), v(1), 1, s(18))
    a.cmp('v_cmp_eq_u32', 'vcc', 0, v(3)); a.valu('v_mov_b32', v(19), s(45)); a.valu('v_cndmask_b32', v(19), 0, v(19), 'vcc')
    a.salu('s_add_u32', s(17), s(28), RO+64); a.valu('v_mov_b32', v(20), s(17))
    for ks in range(8):
        for t in range(2): a.mfma(v(DD+8+4*t, 4), v(OA+32*t+4*ks, 4), v(OB+4*ks, 4), 0 if ks == 0 else v(DD+8+4*t, 4))
    for vv in range(2):
        ta, tc_ = DD+8*vv, DD+8*vv+4
        if vv == 0: a.valu('v_add_f32', v(ta), v(ta), v(19))
        p = 22+8*vv; o = 256*(1-vv)
        a.cvt(v(p), v(ta+3), v(ta+2)); a.cvt(v(p+1), v(ta+1), v(ta)); a.cvt(v(p+6), v(ta+2), v(ta+1))
        a.cvt(v(p+2), v(tc_), v(tc_+1)); a.cvt(v(p+3), v(tc_+2), v(tc_+3))
        a.dsw('ds_write_b64', v(AN), v(p, 2), mods=f'offset:{o+2}')
        a.dsw('ds_write_b16', v(AN), v(p), mods=f'offset:{o+2112}'); a.dsw('ds_write_b32', v(AN), v(p+6), mods=f'offset:{o+2114}')
        a.dsw('ds_write_b16_d16_hi', v(AN), v(p+1), mods=f'offset:{o+2118}')
        if vv == 1:
            a.cvt(v(p+4), 0, v(ta+3)); a.cvt(v(p+5), v(ta+3), v(ta+3))
            a.salu('s_brev_b64', 'exec', 1)
            a.dsw('ds_write_b64', v(20), v(p+4, 2)); a.dsw('ds_write_b32', v(20), v(p+5), mods='offset:2112'); a.dsw('ds_write_b16', v(20), v(p+5), mods='offset:2116')
        a.salu('s_mov_b64', 'exec', 0xffff)
        a.dsw('ds_write2_b32', v(AS2), v(p+2), v(p+3), mods=f'offset0:{16*vv} offset1:{16*vv+32}')
        a.salu('s_mov_b32', 'exec_lo', 0xffff0000)
        for r in range(4):
            a.dsw('ds_write_b16' if r % 2 == 0 else 'ds_write_b16_d16_hi', v(18), v(p+2+(r >> 1)), mods=f'offset:{64*r+32*vv}')
        a.salu('s_mov_b64', 'exec', -1)
    se()
    stamp('tab')
    if not DG and not U2 and OPT['tabfirst']: getU()
    if U2:
        tag_load(10, 4); get_tag(10, 4)
        poll(FL1, 4, XG+17, 100); stamp('sync')
        for e in range(8): a.bload(v(XG+2*e, 2), v(11), SRD_WS, s(12), 64*e, mods=LD)
        conv_pre()
    if DG or U2:
        if DG: a.valu('v_lshlrev_b32', v(10), 4, v(0))
        else: a.valu('v_mov_b32', v(10), v(XG+16))
        for cc in range(4):
            for e in range(4): a.valu('v_perm_b32', v(100+4*cc+e), v(XG+4*e+2+(cc >> 1)), v(XG+4*e+(cc >> 1)), s(46+(cc & 1)))
            a.dsw('ds_write_b128', v(10), v(100+4*cc, 4), mods=f'offset:{UO+cc*WSZ}')
    conv()
    stamps_out('A', 256, 512)

XG_ = 226
ACC, FB, UB, STP, SOP, NB, NA = 12, 44, 84, 100, 124, 136, 168
def rdA(d, dl):
    base, o = (VA16, 8*(16-dl)) if dl <= 16 else (VA32, 8*(32-dl))
    a.dsr('ds_read2_b32', v(d, 2), v(base), mods=f'offset0:{o} offset1:{o+1}'); a.dsr('ds_read2_b32', v(d+2, 2), v(base), mods=f'offset0:{o+2} offset1:{o+3}')
def conv_pre():
    for D_ in (2, 3, 4):
        for h in range(2):
            o = 32*(D_-2)+h; d = FB+4*(2*(D_-2)+h)
            a.dsr('ds_read2_b32', v(d, 2), v(VS2), mods=f'offset0:{o+6} offset1:{o+4}'); a.dsr('ds_read2_b32', v(d+2, 2), v(VS2), mods=f'offset0:{o+2} offset1:{o}')
    for D_ in (4, 5, 6, 7):
        o = 16*(D_-4); d = FB+24+4*(D_-4)
        a.dsr('ds_read2_b32', v(d, 2), v(VS3), mods=f'offset0:{o+3} offset1:{o+2}'); a.dsr('ds_read2_b32', v(d+2, 2), v(VS3), mods=f'offset0:{o+1} offset1:{o}')
    a.dsr('ds_read_u16', v(9), v(VK))
    rdA(NA, 0); rdA(NA+4, 16); rdA(NA+16, 32)
    for k in range(4): a.valu('v_mul_u32_u24', v(MID+k), v(MID+k), v(9))
def conv():
    if not U2: conv_pre()
    if DG: a.waitcnt(lgkm=0); a.barrier(); tag_load(XG_, XG_+1)
    elif U2: a.waitcnt(lgkm=0); a.barrier()
    else: a.waitcnt(vm=0)
    stamp('u')
    def rdU(slot, i, hi): a.dsr('ds_read_b128', v(UB+4*slot, 4), v(VB), mods=f'offset:{512*(i+1)-(48 if hi else 32)}')
    def rdB(i, d0): a.dsr('ds_read_b128', v(NB+4*i, 4), v(VB), mods=f'offset:{512*(i+1)-32*(d0+1)}')
    rdU(0, 0, 0); rdU(1, 0, 1); rdU(2, 1, 0); rdU(3, 1, 1)
    units = []
    for i in range(6):
        units.append((i, 0)); units.append((i, 1))
        if i < 4: units.append((i, 2))
    first = [True]*8
    def acc(T_, A, B):
        a.mfma(v(ACC+4*T_, 4), A, B, 0 if first[T_] else v(ACC+4*T_, 4)); first[T_] = False
    def box(u):
        i, k = units[u]; lo, hi = v(UB+8*(i & 1), 4), v(UB+8*(i & 1)+4, 4); st_ = STP+8*(u % 3)
        (A0, B0), (A1, B1) = [((lo, BOX), (lo, BOX+4)), ((lo, BOX+8), (hi, BOX+4)), ((lo, BOX+12), (hi, BOX+16))][k]
        a.mfma(v(st_, 4), A0, v(B0, 4), 0); a.mfma(v(st_+4, 4), A1, v(B1, 4), 0)
        if (u+1 == len(units) or units[u+1][0] != i) and i+2 < 6:
            rdU(2*(i & 1), i+2, 0); rdU(2*(i & 1)+1, i+2, 1)
    def cv(u, r):
        st_ = STP+8*(u % 3); a.cvt(v(SOP+4*(u % 3)+r), v(st_+r), v(st_+4+r))
    def farlist(u):
        i, k = units[u]
        if k < 2: return [(i+D_, FB+4*(2*(D_-2)+k)) for D_ in (2, 3, 4) if i+D_ < 8]
        return [(i+D_, FB+24+4*(D_-4)) for D_ in (4, 5, 6, 7) if i+D_ < 8]
    sb()
    box(0); box(1)
    for r in range(4): cv(0, r)
    for u in range(len(units)):
        if u+2 < len(units): box(u+2)
        if 4 <= u < 12: rdB(u-4, 0)
        fl = farlist(u)
        for n_, (T_, B) in enumerate(fl):
            acc(T_, v(SOP+4*(u % 3), 4), v(B, 4))
            if u+1 < len(units) and n_ < 2:
                cv(u+1, 2*n_); cv(u+1, 2*n_+1)
        if u+1 < len(units) and len(fl) < 2:
            cv(u+1, 2); cv(u+1, 3)
    for i in range(8):
        acc(i, v(NA, 4), v(NB+4*i, 4))
        if i < 7: acc(i+1, v(NA+4, 4), v(NB+4*i, 4))
        if i+2 < 8: acc(i+2, v(NA+16, 4), v(NB+4*i, 4))
        if i+4 < 8: acc(i+4, v(MID, 4), v(NB+4*i, 4))
        if i == 0: rdA(NA+8, 2); rdA(NA+12, 18)
        rdB(i, 2)
    se()
    stamp('far')
    for it in range(1, 8):
        d0 = 2*it; A0 = NA+8*(it & 1); A1 = A0+4
        for i in range(8):
            acc(i, v(A0, 4), v(NB+4*i, 4))
            if i < 7: acc(i+1, v(A1, 4), v(NB+4*i, 4))
            if it < 7:
                if i == 0: rdA(NA+8*((it+1) & 1), d0+2); rdA(NA+8*((it+1) & 1)+4, d0+18)
                rdB(i, d0+2)
            elif i == 0:
                a.valu('v_and_b32', v(10), 7, v(1)); a.valu('v_lshlrev_b32', v(11), 2, v(2))
                a.valu('v_lshlrev_b32', v(5), 8, v(1)); a.valu('v_add_u32', v(5), s(28), v(5))
            elif i < 5:
                r = i-1
                a.valu('v_or_b32', v(6), r, v(11)); a.valu('v_xor_b32', v(6), v(6), v(10)); a.valu('v_lshl_add_u32', v(UB+r), v(6), 4, v(5))
    stamp('near')
    P = FB
    sb()
    for r in range(4):
        for wq in range(4): a.cvt(v(P+4*r+wq), v(ACC+8*wq+r), v(ACC+8*wq+4+r))
        a.dsw('ds_write_b128', v(UB+r), v(P+4*r, 4))
    a.valu('v_lshrrev_b32', v(5), 2, v(0)); a.valu('v_lshrrev_b32', v(6), 6, v(0))
    a.valu('v_xor_b32', v(6), v(5), v(6)); a.valu('v_and_b32', v(11), 3, v(0)); a.valu('v_lshlrev_b32', v(10), 2, v(11))
    a.valu('v_lshl_add_u32', v(6), v(6), 4, v(10)); a.valu('v_xor_b32', v(4), 64, v(6))
    a.valu('v_mul_u32_u24', v(5), IS, v(5)); a.valu('v_lshl_add_u32', v(5), v(11), 4, v(5))
    a.salu('s_lshl_b32', s(12), s(19), 6); a.salu('s_add_u32', s(12), s(12), YY)
    for k in range(1, 4): a.salu('s_add_u32', s(12+k), s(11+k), 64*IS)
    se()
    a.waitcnt(lgkm=0); a.barrier()
    RS = WSZ//256
    for n in range(4):
        ad = v(6) if n % 2 == 0 else v(4)
        a.dsr('ds_read2st64_b32', v(ACC+4*n, 2), ad, mods=f'offset0:{4*n} offset1:{4*n+RS}')
        a.dsr('ds_read2st64_b32', v(ACC+4*n+2, 2), ad, mods=f'offset0:{4*n+2*RS} offset1:{4*n+3*RS}')
    for n in range(4): a.bstore(v(ACC+4*n, 4), v(5), SRD_WS, s(12+n), mods=ST)
    stamp('y')
    if DG: publish(FLY, 20, XG_, XG_+1, 0, True)
    else: publish(FLY, 20, 10, 11, 0, False)

LDS = 4*WSZ
hdr = open('cdna_kernels/'+NAME+'.s.ref').read().split('; Override launch')[0]
kernel()
a.label('code_end')
out = hdr + f'; workspace pitches: IS={IS} US={US}\n; @launch grid=(512,1,1) block=(256,1,1) lds={LDS}\n'
out += '.amdgcn_target "amdgcn-amd-amdhsa--gfx950"\n.text\n' + a.text()
nv = a.maxv; ns = 102 if OPT['stamp'] else a.maxs
out += f'''.section .rodata,"a"
.p2align 6
.amdhsa_kernel {KN}
  .amdhsa_next_free_vgpr {nv}
  .amdhsa_next_free_sgpr {ns}
  .amdhsa_accum_offset {(nv+3)//4*4}
  .amdhsa_group_segment_fixed_size 0
  .amdhsa_kernarg_size 112
  .amdhsa_user_sgpr_count 2
  .amdhsa_user_sgpr_kernarg_segment_ptr 1
  .amdhsa_system_sgpr_workgroup_id_x 1
.end_amdhsa_kernel
'''
open(sys.argv[1], 'w').write(out)
print('written', sys.argv[1], 'vgpr', nv, 'sgpr', ns, 'lds', LDS, 'nops', a.nops, file=sys.stderr)
```
